```python
import torch

def _softmax(x, axis=-1):
    return torch.softmax(x, dim=axis)

def _gelu(x):
    return torch.nn.functional.gelu(x, approximate='tanh')

def _silu(x):
    return torch.nn.functional.silu(x)

def _sigmoid(x):
    return torch.sigmoid(x)

def _layernorm(x, axis=-1, eps=1e-05):
    m = x.mean(dim=axis, keepdim=True)
    v = x.var(dim=axis, keepdim=True, unbiased=False)
    return (x - m) / torch.sqrt(v + eps)

def _scatter_add(tgt, idx, src, axis=0):
    return tgt.clone().index_add_(axis, idx, src)

def _segment_sum(src, seg, n):
    out = torch.zeros((n,) + src.shape[1:], dtype=src.dtype)
    return out.index_add_(0, seg, src)

def _pad(x, pw):
    flat = tuple((v for pair in reversed(pw) for v in pair))
    return torch.nn.functional.pad(x, flat)
kernel_name = 'interleave_layers__memory_aug_recurrent_mem_tr__mixer_channel_mlp__prompt'

def setup_inputs():

    _w = lambda a: (lambda t: t.to(torch.bfloat16) if t.is_floating_point() else t)(torch.as_tensor(a))

    def _A_setup():
        B, S, Dm = (1, 2048, 1024)
        H, Dh = (32, 128)
        M, seg = (8, 32)
        seg = min(seg, S)
        S = S // seg * seg
        return {'x': _w((lambda *s: torch.randn(*s, dtype=torch.bfloat16) * 0.05)(B, S, Dm)), 'mem0': _w((lambda *s: torch.randn(*s, dtype=torch.bfloat16) * 0.8)(B, M, Dm)), 'Wq': _w((lambda *s: torch.randn(*s, dtype=torch.bfloat16) * 1.6)(Dm, H, Dh) * Dm ** (-0.5)), 'Wk': _w((lambda *s: torch.randn(*s, dtype=torch.bfloat16) * 1.6)(Dm, H, Dh) * Dm ** (-0.5)), 'Wv': _w((lambda *s: torch.randn(*s, dtype=torch.bfloat16) * 0.8)(Dm, H, Dh) * Dm ** (-0.5)), 'Wo': _w((lambda *s: torch.randn(*s, dtype=torch.bfloat16) * 0.8)(H, Dh, Dm) * (H * Dh) ** (-0.5)), 'seg_len': seg}
    _A_in = _A_setup()

    def _B_setup():
        B, S, D, F = (1, 2048, 1024, 3584)
        return {'x': _w((lambda *s: torch.randn(*s, dtype=torch.bfloat16) * 0.05)(B, S, D)), 'w1': _w((lambda *s: torch.randn(*s, dtype=torch.bfloat16) * 3.2)(D, F) * D ** (-0.5)), 'b1': _w((lambda *s: torch.randn(*s, dtype=torch.bfloat16) * 0.8)(F)), 'w2': _w((lambda *s: torch.randn(*s, dtype=torch.bfloat16) * 0.1)(F, D) * F ** (-0.5)), 'b2': _w((lambda *s: torch.randn(*s, dtype=torch.bfloat16) * 0.1)(D))}
    _B_in = _B_setup()
    return {'A_x': _A_in['x'], 'A_mem0': _A_in['mem0'], 'A_Wq': _A_in['Wq'], 'A_Wk': _A_in['Wk'], 'A_Wv': _A_in['Wv'], 'A_Wo': _A_in['Wo'], 'A_seg_len': _A_in['seg_len'], 'B_x': _B_in['x'], 'B_w1': _B_in['w1'], 'B_b1': _B_in['b1'], 'B_w2': _B_in['w2'], 'B_b2': _B_in['b2']}

def reference(A_x, A_mem0, A_Wq, A_Wk, A_Wv, A_Wo, A_seg_len, B_x, B_w1, B_b1, B_w2, B_b2):

    def _A_ref(x, mem0, Wq, Wk, Wv, Wo, seg_len):
        B, S, Dm = x.shape
        H, Dh = (Wq.shape[1], Wq.shape[2])
        M = mem0.shape[1]
        scale = Dh ** (-0.5)
        n_seg = S // seg_len
        L = M + seg_len
        idx = torch.arange(L)
        mask = (idx[:, None] < M) | (idx[:, None] >= idx[None, :])
        mem = mem0
        outs = []
        for s in range(n_seg):
            xs = x[:, s * seg_len:(s + 1) * seg_len, :].clone()
            h = torch.concatenate([mem, xs], axis=1)
            q = torch.einsum('btd,dhe->bhte', h, Wq)
            k = torch.einsum('btd,dhe->bhte', h, Wk)
            v = torch.einsum('btd,dhe->bhte', h, Wv)
            scores = torch.einsum('bhqe,bhke->bhqk', q, k) * scale
            scores = torch.where(mask[None, None], scores, -1000000000.0)
            p = _softmax(scores, axis=-1)
            o = torch.einsum('bhqk,bhke->bhqe', p, v)
            o = torch.einsum('bhte,hed->btd', o, Wo)
            mem = o[:, :M, :].clone()
            outs.append(o[:, M:, :])
        return torch.concatenate(outs, axis=1)

    def _B_ref(x, w1, b1, w2, b2):
        y = _layernorm(x, axis=-1)
        h = _gelu(torch.einsum('bsd,df->bsf', y, w1) + b1)
        return torch.einsum('bsf,fd->bsd', h, w2) + b2
    x = A_x
    x = x + _A_ref(_layernorm(x, axis=-1), A_mem0, A_Wq, A_Wk, A_Wv, A_Wo, A_seg_len)
    x = x + _B_ref(_layernorm(x, axis=-1), B_w1, B_b1, B_w2, B_b2)
    x = x + _A_ref(_layernorm(x, axis=-1), A_mem0, A_Wq, A_Wk, A_Wv, A_Wo, A_seg_len)
    x = x + _B_ref(_layernorm(x, axis=-1), B_w1, B_b1, B_w2, B_b2)
    return x
```

```python
class Kern:
    def __init__(self, name, nvgpr=128, nagpr=0, nsgpr=96):
        self.name = name
        self.lines = []
        self.nvgpr = nvgpr
        self.nagpr = nagpr
        self.nsgpr = nsgpr
        self._lab = 0
    def __call__(self, s):
        for l in s.strip('\n').split('\n'):
            self.lines.append('    ' + l.strip())
    def label(self, base='L'):
        self._lab += 1
        return f'{self.name}_{base}{self._lab}'
    def put(self, lab):
        self.lines.append(f'{lab}:')
    def text(self):
        out = []
        out.append(f'.globl {self.name}')
        out.append('.p2align 8')
        out.append(f'.type {self.name},@function')
        out.append(f'{self.name}:')
        out += self.lines
        out.append('    s_endpgm')
        return '\n'.join(out)
    def desc(self):
        acc = (self.nvgpr + 3) // 4 * 4
        tot = acc + self.nagpr if self.nagpr else self.nvgpr
        return f'''.amdhsa_kernel {self.name}
  .amdhsa_next_free_vgpr {tot}
  .amdhsa_next_free_sgpr {self.nsgpr}
  .amdhsa_accum_offset {acc}
  .amdhsa_group_segment_fixed_size 0
  .amdhsa_kernarg_size 120
  .amdhsa_user_sgpr_count 2
  .amdhsa_user_sgpr_kernarg_segment_ptr 1
  .amdhsa_system_sgpr_workgroup_id_x 1
.end_amdhsa_kernel'''

ARG = dict(x=0, mem0=8, Wq=16, Wk=24, Wv=32, Wo=40, seg=48, Bx=56, w1=64, b1=72, w2=80, b2=88, out=96, dbg=104, ws=112)

def srd(k, d, lo, hi, nbytes):
    k(f's_mov_b32 s{d}, s{lo}')
    k(f's_and_b32 s{d+1}, s{hi}, 0xffff')
    k(f's_mov_b32 s{d+2}, {nbytes}')
    k(f's_mov_b32 s{d+3}, 0x00020000')

def srd_off(k, d, lo, hi, off, nbytes):
    k(f's_add_u32 s{d}, s{lo}, {off}')
    k(f's_addc_u32 s{d+1}, s{hi}, 0')
    k(f's_and_b32 s{d+1}, s{d+1}, 0xffff')
    k(f's_mov_b32 s{d+2}, {nbytes}')
    k(f's_mov_b32 s{d+3}, 0x00020000')
```

```python
from asmlib import *

def gen_gemm(name, M, N, Kd, a_off, w_slots, w_ncols, out_off_or_arg, epi, WM, WN, TM, TN, BK=64, NBUF=3,
             res_kind=None, res_off=None, bias_slot=None, out_kind='ws', ldo=None):
    NW = WM * WN
    BM = WM * TM * 32
    BN = WN * TN * 32
    assert M % BM == 0 and N % BN == 0 and Kd % BK == 0 and BK == 64
    nbx = N // BN
    nby = M // BM
    ntiles = nbx * nby
    KT = Kd // BK
    lda2 = Kd * 2
    ldb2 = w_ncols * 2
    if ldo is None: ldo = N
    ldo2 = ldo * 2
    XS = BM * 128
    NBLK = BN // 64
    WS_ = NBLK * BK * 128
    STG = XS + WS_
    lds_bytes = STG * NBUF
    nX = BM // 8 // NW
    nWi = NBLK * 8 // NW
    assert nX * 8 * NW == BM and nWi * NW == NBLK * 8
    nacc = TM * TN * 16
    vXoffE, vXoffO, vWoff = 2, 3, 4
    vXr = 5
    vWr = 9
    vXa = 11
    vWa = 15
    vt = 17
    fX = 24
    fW = fX + 2 * TM * 4
    nv = fW + 2 * TN * 4
    nv = (nv + 3) // 4 * 4
    k = Kern(name, nvgpr=nv, nagpr=nacc, nsgpr=96)
    k.lds = lds_bytes
    k.grid = ntiles
    k.block = NW * 64
    done = k.label('done')
    k(f's_cmp_ge_u32 s2, {ntiles}')
    k(f's_cbranch_scc1 {done}')
    k(f's_load_dwordx2 s[4:5], s[0:1], {ARG["ws"]}')
    for i, sl in enumerate(w_slots):
        k(f's_load_dwordx2 s[{40+2*i}:{41+2*i}], s[0:1], {sl}')
    if out_kind == 'arg':
        k(f's_load_dwordx2 s[48:49], s[0:1], {out_off_or_arg}')
    if bias_slot is not None:
        k(f's_load_dwordx2 s[50:51], s[0:1], {bias_slot}')
    if res_kind == 'arg':
        k(f's_load_dwordx2 s[52:53], s[0:1], {res_off}')
    magic = (1 << 32) // nbx + 1
    k(f's_mov_b32 s34, {magic}')
    k('s_mul_hi_u32 s35, s2, s34')
    k(f's_mul_i32 s36, s35, {nbx}')
    k('s_sub_u32 s34, s2, s36')
    k('v_and_b32 v1, 63, v0')
    k('v_lshrrev_b32 v17, 6, v0')
    k('s_nop 0')
    k('v_readfirstlane_b32 s37, v17')
    k('s_waitcnt lgkmcnt(0)')
    k(f's_mul_i32 s38, s35, {BM*lda2}')
    k(f's_add_u32 s38, s38, {a_off}')
    srd_off(k, 8, 4, 5, 's38', BM * lda2)
    for b in range(NBLK):
        k(f's_mul_i32 s38, s34, {BN}')
        k(f's_add_u32 s38, s38, {64*b}')
        if len(w_slots) > 1:
            assert w_ncols == 4096
            k('s_lshr_b32 s39, s38, 12')
            k('s_and_b32 s38, s38, 4095')
            k('s_cmp_eq_u32 s39, 1')
            k('s_cselect_b32 s54, s42, s40')
            k('s_cselect_b32 s55, s43, s41')
            k('s_cmp_eq_u32 s39, 2')
            k('s_cselect_b32 s54, s44, s54')
            k('s_cselect_b32 s55, s45, s55')
        else:
            k('s_mov_b32 s54, s40')
            k('s_mov_b32 s55, s41')
        k('s_lshl_b32 s38, s38, 1')
        d = 12 + 4 * b
        k(f's_add_u32 s{d}, s54, s38')
        k(f's_addc_u32 s{d+1}, s55, 0')
        k(f's_and_b32 s{d+1}, s{d+1}, 0xffff')
        k(f's_sub_u32 s{d+2}, {Kd*ldb2}, s38')
        k(f's_mov_b32 s{d+3}, 0x00020000')
    if out_kind == 'arg':
        srd(k, 28, 48, 49, M * ldo2)
    else:
        srd_off(k, 28, 4, 5, out_off_or_arg, M * ldo2)
    if res_kind == 'arg':
        srd(k, 56, 52, 53, M * ldo2)
    elif res_kind == 'ws':
        srd_off(k, 56, 4, 5, res_off, M * ldo2)
    if bias_slot is not None:
        srd(k, 60, 50, 51, N * 2)
    k(f'v_lshrrev_b32 v17, 3, v1')
    k(f'v_and_b32 v18, 7, v1')
    k(f'v_lshrrev_b32 v19, 4, v1')
    k(f'v_xor_b32 v20, v18, v19')
    k(f'v_xor_b32 v21, 4, v20')
    k(f's_mov_b32 s38, {lda2}')
    k(f'v_mul_lo_u32 v22, s38, v17')
    k(f'v_lshl_add_u32 v{vXoffE}, v20, 4, v22')
    k(f'v_lshl_add_u32 v{vXoffO}, v21, 4, v22')
    k(f'v_and_b32 v20, 1, v19')
    k(f'v_lshlrev_b32 v20, 2, v20')
    k(f'v_xor_b32 v20, v18, v20')
    k(f's_mov_b32 s38, {ldb2}')
    k(f'v_mul_lo_u32 v22, s38, v17')
    k(f'v_lshl_add_u32 v{vWoff}, v20, 4, v22')
    k(f's_and_b32 s38, s37, {WM-1}')
    k(f's_lshr_b32 s39, s37, {WM.bit_length()-1}')
    assert WM & (WM - 1) == 0
    k('v_and_b32 v17, 31, v1')
    k('v_lshrrev_b32 v18, 5, v1')
    k('v_lshrrev_b32 v19, 1, v17')
    k('v_and_b32 v19, 7, v19')
    k(f's_mul_i32 s54, s38, {TM*32*128}')
    for t in range(4):
        k(f'v_add_u32 v20, {2*t}, v18')
        k('v_xor_b32 v20, v20, v19')
        k('v_lshlrev_b32 v20, 4, v20')
        k(f'v_lshl_add_u32 v20, v17, 7, v20')
        k(f'v_add_u32 v{vXr+t}, s54, v20')
    k('v_and_b32 v17, 15, v1')
    k('v_lshrrev_b32 v19, 2, v17')
    k('v_and_b32 v20, 3, v17')
    k('v_bfe_u32 v21, v1, 4, 1')
    k('v_lshlrev_b32 v22, 1, v21')
    k('v_lshrrev_b32 v23, 1, v20')
    k('v_add_u32 v22, v22, v23')
    k('v_bfe_u32 v23, v19, 1, 1')
    k('v_lshlrev_b32 v23, 2, v23')
    k('v_xor_b32 v22, v22, v23')
    k('v_lshlrev_b32 v22, 4, v22')
    k('v_and_b32 v23, 1, v20')
    k('v_lshl_add_u32 v22, v23, 3, v22')
    k('v_lshl_add_u32 v23, v18, 3, v19')
    k('v_lshl_add_u32 v22, v23, 7, v22')
    k(f'v_add_u32 v{vWr}, {XS}, v22')
    k(f'v_xor_b32 v{vWr+1}, 64, v{vWr}')
    k(f's_mul_i32 s55, s39, {TN}')
    for i in range(nacc):
        k(f'v_accvgpr_write_b32 a{i}, 0')
    k(f's_mul_i32 s67, s37, {nX}')
    k(f's_mul_i32 s68, s37, {nWi}')
    def issue():
        for i in range(nX):
            assert nX % 2 == 0
            k(f's_add_u32 s69, s67, {i}')
            k(f's_mul_i32 s70, s69, {8*lda2}')
            k('s_add_u32 s70, s70, s64')
            k('s_lshl_b32 s69, s69, 10')
            k('s_add_u32 m0, s69, s66')
            vo = vXoffE if i % 2 == 0 else vXoffO
            k(f'buffer_load_dwordx4 v{vo}, s[8:11], s70 offen lds')
        for i in range(nWi):
            k(f's_add_u32 s69, s68, {i}')
            k('s_and_b32 s71, s69, 7')
            k(f's_mul_i32 s70, s71, {8*ldb2}')
            k('s_add_u32 s70, s70, s65')
            k('s_lshl_b32 s72, s69, 10')
            k('s_add_u32 s72, s72, s66')
            k(f's_add_u32 m0, s72, {XS}')
            if NBLK == 1:
                k(f'buffer_load_dwordx4 v{vWoff}, s[12:15], s70 offen lds')
            else:
                k('s_lshr_b32 s69, s69, 3')
                end = k.label('we')
                for b in range(NBLK):
                    nxt = k.label('wb')
                    if b < NBLK - 1:
                        k(f's_cmp_lg_u32 s69, {b}')
                        k(f's_cbranch_scc1 {nxt}')
                    k(f'buffer_load_dwordx4 v{vWoff}, s[{12+4*b}:{15+4*b}], s70 offen lds')
                    if b < NBLK - 1:
                        k(f's_branch {end}')
                        k.put(nxt)
                k.put(end)
    per_stage = nX + nWi
    k('s_mov_b32 s64, 0')
    k('s_mov_b32 s65, 0')
    k('s_mov_b32 s66, 0')
    issue()
    k(f's_mov_b32 s64, {BK*2}')
    k(f's_mov_b32 s65, {BK*ldb2}')
    k(f's_mov_b32 s66, {STG}')
    issue()
    k('s_mov_b32 s73, 0')
    k('s_mov_b32 s74, 0')
    k(f's_mov_b32 s66, {2*STG}')
    loop = k.label('loop')
    k.put(loop)
    k(f's_waitcnt vmcnt({per_stage})')
    k('s_barrier')
    k(f's_add_u32 s64, s64, {BK*2}')
    k(f's_add_u32 s65, s65, {BK*ldb2}')
    issue()
    k(f's_add_u32 s66, s66, {STG}')
    k(f's_cmp_ge_u32 s66, {NBUF*STG}')
    k(f's_cselect_b32 s75, {NBUF*STG}, 0')
    k('s_sub_u32 s66, s66, s75')
    for t in range(4):
        k(f'v_add_u32 v{vXa+t}, s74, v{vXr+t}')
    for q in range(2):
        k(f'v_add_u32 v{vWa+q}, s74, v{vWr+q}')
    for i in range(TN):
        k(f's_add_u32 s76, s55, {i}')
        k('s_and_b32 s77, s76, 1')
        k('s_lshr_b32 s76, s76, 1')
        k(f's_mul_i32 s76, s76, {BK*128}')
        k('s_cmp_eq_u32 s77, 0')
        k(f's_cselect_b64 s[78:79], -1, 0')
        k(f'v_cndmask_b32 v{vt+i}, v{vWa+1}, v{vWa}, s[78:79]')
        k(f'v_add_u32 v{vt+i}, s76, v{vt+i}')
    def reads(t, st):
        for j in range(TM):
            r = fX + (st * TM + j) * 4
            k(f'ds_read_b128 v[{r}:{r+3}], v{vXa+t} offset:{j*32*128}')
        for i in range(TN):
            r = fW + (st * TN + i) * 4
            k(f'ds_read_b64_tr_b16 v[{r}:{r+1}], v{vt+i} offset:{t*2048}')
            k(f'ds_read_b64_tr_b16 v[{r+2}:{r+3}], v{vt+i} offset:{t*2048+512}')
    nrd = TM + 2 * TN
    reads(0, 0)
    for t in range(4):
        st = t & 1
        if t < 3:
            reads(t + 1, st ^ 1)
            k(f's_waitcnt lgkmcnt({nrd})')
        else:
            k('s_waitcnt lgkmcnt(0)')
        for j in range(TM):
            for i in range(TN):
                a = (j * TN + i) * 16
                rx = fX + (st * TM + j) * 4
                rw = fW + (st * TN + i) * 4
                k(f'v_mfma_f32_32x32x16_bf16 a[{a}:{a+15}], v[{rw}:{rw+3}], v[{rx}:{rx+3}], a[{a}:{a+15}]')
    k(f's_add_u32 s74, s74, {STG}')
    k(f's_cmp_ge_u32 s74, {NBUF*STG}')
    k(f's_cselect_b32 s75, {NBUF*STG}, 0')
    k('s_sub_u32 s74, s74, s75')
    k('s_add_u32 s73, s73, 1')
    k(f's_cmp_lt_u32 s73, {KT}')
    k(f's_cbranch_scc1 {loop}')
    k('s_nop 15')
    k('s_nop 3')
    k('v_and_b32 v17, 31, v1')
    k('v_lshrrev_b32 v18, 5, v1')
    k(f's_mul_i32 s64, s35, {BM}')
    k(f's_mul_i32 s65, s38, {TM*32}')
    k('s_add_u32 s64, s64, s65')
    k('v_add_u32 v17, s64, v17')
    k(f's_mov_b32 s65, {ldo2}')
    k('v_mul_lo_u32 v17, s65, v17')
    k(f's_mul_i32 s64, s34, {BN}')
    k(f's_lshl_b32 s65, s55, 5')
    k('s_add_u32 s64, s64, s65')
    k('v_lshlrev_b32 v18, 2, v18')
    k('v_add_u32 v18, s64, v18')
    k('v_lshlrev_b32 v18, 1, v18')
    k('v_add_u32 v17, v17, v18')
    GC = '0x3f4c422a'
    for j in range(TM):
        for i in range(TN):
            a = (j * TN + i) * 16
            for q in range(4):
                imm = (i * 32 + 8 * q) * 2
                rowoff = j * 32 * ldo2
                if 'res' in epi:
                    k(f's_mov_b32 s66, {rowoff}')
                    k(f'buffer_load_dwordx2 v[20:21], v17, s[56:59], s66 offen offset:{imm}')
                if 'bias' in epi:
                    k(f'buffer_load_dwordx2 v[22:23], v18, s[60:63], 0 offen offset:{imm}')
                for e in range(4):
                    k(f'v_accvgpr_read_b32 v{24+e}, a{a+4*q+e}')
                if 'res' in epi or 'bias' in epi:
                    k('s_waitcnt vmcnt(0)')
                if epi != 'plain':
                    k('v_cvt_pk_bf16_f32 v28, v24, v25')
                    k('v_cvt_pk_bf16_f32 v29, v26, v27')
                    k('v_lshlrev_b32 v24, 16, v28')
                    k('v_and_b32 v25, 0xffff0000, v28')
                    k('v_lshlrev_b32 v26, 16, v29')
                    k('v_and_b32 v27, 0xffff0000, v29')
                if 'bias' in epi:
                    k('v_lshlrev_b32 v28, 16, v22')
                    k('v_and_b32 v29, 0xffff0000, v22')
                    k('v_lshlrev_b32 v30, 16, v23')
                    k('v_and_b32 v31, 0xffff0000, v23')
                    for e in range(4):
                        k(f'v_add_f32 v{24+e}, v{24+e}, v{28+e}')
                    k('v_cvt_pk_bf16_f32 v28, v24, v25')
                    k('v_cvt_pk_bf16_f32 v29, v26, v27')
                    k('v_lshlrev_b32 v24, 16, v28')
                    k('v_and_b32 v25, 0xffff0000, v28')
                    k('v_lshlrev_b32 v26, 16, v29')
                    k('v_and_b32 v27, 0xffff0000, v29')
                if epi == 'bias_gelu':
                    k('s_mov_b32 s66, 0x3d372713')
                    k('s_mov_b32 s67, 0xc0135761')
                    for e in range(4):
                        x = 24 + e
                        k(f'v_mul_f32 v28, v{x}, v{x}')
                        k(f'v_mul_f32 v28, v28, v{x}')
                        k(f'v_fma_f32 v28, s66, v28, v{x}')
                        k(f'v_mul_f32 v28, s67, v28')
                        k(f'v_exp_f32 v28, v28')
                        k('s_nop 0')
                        k(f'v_add_f32 v28, 1.0, v28')
                        k(f'v_rcp_f32 v28, v28')
                        k('s_nop 0')
                        k(f'v_mul_f32 v{x}, v{x}, v28')
                if 'res' in epi:
                    k('v_lshlrev_b32 v28, 16, v20')
                    k('v_and_b32 v29, 0xffff0000, v20')
                    k('v_lshlrev_b32 v30, 16, v21')
                    k('v_and_b32 v31, 0xffff0000, v21')
                    for e in range(4):
                        k(f'v_add_f32 v{24+e}, v{24+e}, v{28+e}')
                k('v_cvt_pk_bf16_f32 v28, v24, v25')
                k('v_cvt_pk_bf16_f32 v29, v26, v27')
                k(f's_mov_b32 s66, {rowoff}')
                k(f'buffer_store_dwordx2 v[28:29], v17, s[28:31], s66 offen offset:{imm}')
                k('s_nop 1')
    k.put(done)
    return k
```

```python
from asmlib import *

def wave_sum(k, v, tmp, addr_tmp):
    pass

def gen_ln(name, src_kind, src_off, dst_off, double):
    k = Kern(name, nvgpr=64)
    NB = 2048*1024*2
    k('s_cmp_ge_u32 s2, 512')
    done = k.label('done')
    k(f's_cbranch_scc1 {done}')
    k(f's_load_dwordx2 s[4:5], s[0:1], {ARG["ws"]}')
    if src_kind == 'arg':
        k(f's_load_dwordx2 s[6:7], s[0:1], {src_off}')
    k('s_waitcnt lgkmcnt(0)')
    if src_kind == 'arg':
        srd(k, 8, 6, 7, NB)
    else:
        srd_off(k, 8, 4, 5, src_off, NB)
    srd_off(k, 12, 4, 5, dst_off, NB)
    k('v_and_b32 v1, 63, v0')
    k('v_lshrrev_b32 v2, 6, v0')
    k('s_lshl_b32 s3, s2, 2')
    k('v_add_u32 v2, s3, v2')
    k('v_lshlrev_b32 v3, 11, v2')
    k('v_lshl_add_u32 v3, v1, 4, v3')
    k('buffer_load_dwordx4 v[4:7], v3, s[8:11], 0 offen')
    k('buffer_load_dwordx4 v[8:11], v3, s[8:11], 0 offen offset:1024')
    for i, m in enumerate([1, 2, 4, 8, 16, 32]):
        k(f'v_xor_b32 v{50+i}, {m}, v1')
        k(f'v_lshlrev_b32 v{50+i}, 2, v{50+i}')
    k('s_waitcnt vmcnt(0)')
    for i in range(8):
        k(f'v_lshlrev_b32 v{16+2*i}, 16, v{4+i}')
        k(f'v_and_b32 v{17+2*i}, 0xffff0000, v{4+i}')
    def allsum(reg):
        for i in range(6):
            k(f'ds_bpermute_b32 v48, v{50+i}, v{reg}')
            k('s_waitcnt lgkmcnt(0)')
            k(f'v_add_f32 v{reg}, v{reg}, v48')
    def rnd(reg):
        k(f'v_cvt_pk_bf16_f32 v{reg}, v{reg}, v{reg}')
        k(f'v_lshlrev_b32 v{reg}, 16, v{reg}')
    def ln_pass():
        k('v_add_f32 v40, v16, v17')
        for i in range(18, 32):
            k(f'v_add_f32 v40, v40, v{i}')
        allsum(40)
        k('v_mul_f32 v40, 0x3a800000, v40')
        k('v_sub_f32 v41, v16, v40')
        k('v_mul_f32 v42, v41, v41')
        for i in range(17, 32):
            k(f'v_sub_f32 v41, v{i}, v40')
            k('v_fmac_f32 v42, v41, v41')
        allsum(42)
        k('v_mul_f32 v42, 0x3a800000, v42')
        rnd(40); rnd(42)
        k('v_add_f32 v42, 0x3727c5ac, v42')
        rnd(42)
        k('v_sqrt_f32 v42, v42')
        k('s_nop 0')
        rnd(42)
        k('v_rcp_f32 v43, v42')
        k('s_nop 0')
        k('v_fma_f32 v44, -v42, v43, 2.0')
        k('v_mul_f32 v43, v43, v44')
        for i in range(16, 32, 2):
            k(f'v_sub_f32 v{i}, v{i}, v40')
            k(f'v_sub_f32 v{i+1}, v{i+1}, v40')
            k(f'v_cvt_pk_bf16_f32 v44, v{i}, v{i+1}')
            k(f'v_lshlrev_b32 v{i}, 16, v44')
            k(f'v_and_b32 v{i+1}, 0xffff0000, v44')
            k(f'v_mul_f32 v{i}, v{i}, v43')
            k(f'v_mul_f32 v{i+1}, v{i+1}, v43')
            k(f'v_cvt_pk_bf16_f32 v{4+(i-16)//2}, v{i}, v{i+1}')
            k(f'v_lshlrev_b32 v{i}, 16, v{4+(i-16)//2}')
            k(f'v_and_b32 v{i+1}, 0xffff0000, v{4+(i-16)//2}')
    ln_pass()
    if double:
        ln_pass()
    k('buffer_store_dwordx4 v[4:7], v3, s[12:15], 0 offen')
    k('buffer_store_dwordx4 v[8:11], v3, s[12:15], 0 offen offset:1024')
    k.put(done)
    return k
```

```python
from asmlib import *

def gen_zero(name, acc_off, flag_off):
    k = Kern(name, nvgpr=16)
    k.grid, k.block = 640, 256
    done = k.label('done')
    k('s_cmp_ge_u32 s2, 640')
    k(f's_cbranch_scc1 {done}')
    k(f's_load_dwordx2 s[4:5], s[0:1], {ARG["ws"]}')
    k('s_waitcnt lgkmcnt(0)')
    srd_off(k, 8, 4, 5, acc_off, 2*1024*1024)
    srd_off(k, 12, 4, 5, flag_off, 512*1024)
    k('s_lshl_b32 s3, s2, 8')
    k('v_add_u32 v1, s3, v0')
    k('v_lshlrev_b32 v1, 4, v1')
    for i in range(4): k(f'v_mov_b32 v{4+i}, 0')
    k('buffer_store_dwordx4 v[4:7], v1, s[8:11], 0 offen')
    k(f'v_subrev_u32 v1, {2*1024*1024}, v1')
    k('buffer_store_dwordx4 v[4:7], v1, s[12:15], 0 offen')
    k.put(done)
    return k

SCALE = '0x3db504f3'
LOG2E = '0x3fb8aa3b'

def gen_rec(name, qkv_off, mqkv_off, acc_off, flag_off):
    k = Kern(name, nvgpr=200, nagpr=128, nsgpr=96)
    k.grid, k.block, k.lds = 256, 256, 131072
    done = k.label('done')
    k('s_cmp_ge_u32 s2, 256')
    k(f's_cbranch_scc1 {done}')
    k(f's_load_dwordx2 s[4:5], s[0:1], {ARG["ws"]}')
    k(f's_load_dwordx2 s[6:7], s[0:1], {ARG["mem0"]}')
    k(f's_load_dwordx2 s[40:41], s[0:1], {ARG["Wq"]}')
    k(f's_load_dwordx2 s[42:43], s[0:1], {ARG["Wk"]}')
    k(f's_load_dwordx2 s[44:45], s[0:1], {ARG["Wv"]}')
    k(f's_load_dwordx2 s[46:47], s[0:1], {ARG["Wo"]}')
    k('s_lshr_b32 s34, s2, 3')
    k('s_and_b32 s35, s2, 7')
    k('v_and_b32 v1, 63, v0')
    k('v_lshrrev_b32 v2, 6, v0')
    k('s_nop 0')
    k('v_readfirstlane_b32 s36, v2')
    k('v_and_b32 v2, 15, v1')
    k('v_lshrrev_b32 v3, 4, v1')
    k('s_waitcnt lgkmcnt(0)')
    k('s_lshl_b32 s37, s34, 8')
    k('s_lshl_b32 s38, s35, 5')
    k('s_add_u32 s37, s37, s38')
    for c in range(3):
        k(f's_add_u32 s{8+4*c}, s{40+2*c}, s37')
        k(f's_addc_u32 s{9+4*c}, s{41+2*c}, 0')
        k(f's_and_b32 s{9+4*c}, s{9+4*c}, 0xffff')
        k(f's_sub_u32 s{10+4*c}, {1024*8192}, s37')
        k(f's_mov_b32 s{11+4*c}, 0x00020000')
    k('s_lshl_b32 s38, s34, 18')
    k('s_lshl_b32 s39, s35, 8')
    k('s_add_u32 s38, s38, s39')
    k('s_add_u32 s20, s46, s38')
    k('s_addc_u32 s21, s47, 0')
    k('s_and_b32 s21, s21, 0xffff')
    k(f's_sub_u32 s22, {4096*2048}, s38')
    k('s_mov_b32 s23, 0x00020000')
    k('v_lshrrev_b32 v4, 1, v1')
    k('v_lshlrev_b32 v4, 13, v4')
    k('v_and_b32 v5, 1, v1')
    k('v_lshl_add_u32 v4, v5, 4, v4')
    for c in range(3):
        for i in range(8):
            k(f's_lshl_b32 s38, s36, 3')
            k(f's_add_u32 s38, s38, {i}')
            k('s_lshl_b32 s39, s38, 18')
            k('s_lshl_b32 s38, s38, 10')
            k(f's_add_u32 m0, s38, {c*32768}')
            k(f'buffer_load_dwordx4 v4, s[{8+4*c}:{11+4*c}], s39 offen lds')
    k('v_lshrrev_b32 v4, 4, v1')
    k('v_lshlrev_b32 v4, 11, v4')
    k('v_lshl_add_u32 v4, v2, 4, v4')
    for i in range(8):
        k(f's_lshl_b32 s38, s36, 3')
        k(f's_add_u32 s38, s38, {i}')
        k('s_lshl_b32 s39, s38, 13')
        k('s_lshl_b32 s38, s38, 10')
        k(f's_add_u32 m0, s38, {98304}')
        k(f'buffer_load_dwordx4 v4, s[20:23], s39 offen lds')
    k('s_waitcnt vmcnt(0)')
    k('s_barrier')
    k('v_lshrrev_b32 v4, 2, v2')
    k('v_and_b32 v5, 3, v2')
    k('v_lshl_add_u32 v4, v3, 3, v4')
    k('v_lshlrev_b32 v4, 5, v4')
    k('v_lshl_add_u32 v4, v5, 3, v4')
    k('s_lshl_b32 s38, s36, 13')
    k('v_add_u32 v4, s38, v4')
    for c in range(3):
        if c == 2: k('v_add_u32 v4, 65536, v4')
        for t in range(8):
            k(f'ds_read_b64_tr_b16 v[8:9], v4 offset:{(c&1)*32768 + t*1024}')
            k(f'ds_read_b64_tr_b16 v[10:11], v4 offset:{(c&1)*32768 + t*1024 + 128}')
            k('s_waitcnt lgkmcnt(0)')
            for e in range(4):
                k(f'v_accvgpr_write_b32 a{(c*8+t)*4+e}, v{8+e}')
    k('v_lshrrev_b32 v4, 2, v2')
    k('v_lshl_add_u32 v4, v3, 2, v4')
    k('v_lshlrev_b32 v4, 8, v4')
    k('v_lshl_add_u32 v4, v5, 3, v4')
    k('s_lshl_b32 s38, s36, 6')
    k('s_add_u32 s38, s38, 98304')
    k('v_add_u32 v4, s38, v4')
    for tile in range(2):
        for u in range(4):
            k(f'ds_read_b64_tr_b16 v[8:9], v4 offset:{u*8192 + tile*32}')
            k(f'ds_read_b64_tr_b16 v[10:11], v4 offset:{u*8192 + tile*32 + 4096}')
            k('s_waitcnt lgkmcnt(0)')
            for e in range(4):
                k(f'v_accvgpr_write_b32 a{96+(tile*4+u)*4+e}, v{8+e}')
    k('s_barrier')
    srd_off(k, 8, 4, 5, qkv_off, 2048*24576)
    srd_off(k, 12, 4, 5, mqkv_off, 8*1024*1024)
    srd_off(k, 16, 4, 5, mqkv_off + 8*1024*1024, 4*1024*1024)
    srd_off(k, 20, 4, 5, acc_off, 2*1024*1024)
    srd_off(k, 24, 4, 5, flag_off, 512*1024)
    srd(k, 28, 6, 7, 16384)
    k('s_add_u32 s48, s4, %d' % acc_off)
    k('s_addc_u32 s49, s5, 0')
    k('s_add_u32 s50, s4, %d' % flag_off)
    k('s_addc_u32 s51, s5, 0')
    k('v_and_b32 v4, 7, v2')
    k('v_lshlrev_b32 v4, 12, v4')
    k('v_lshl_add_u32 v4, v3, 5, v4')
    k('s_lshl_b32 s38, s36, 10')
    k('v_add_u32 v4, s38, v4')
    k('v_lshrrev_b32 v5, 1, v4')
    k('s_mov_b32 s38, 24576')
    k('v_mul_lo_u32 v6, s38, v2')
    k('v_lshl_add_u32 v6, v3, 4, v6')
    k('s_lshl_b32 s39, s34, 8')
    k('v_add_u32 v6, s39, v6')
    k('v_add_u32 v6, 8192, v6')
    k('v_and_b32 v7, 7, v2')
    k('v_lshlrev_b32 v7, 14, v7')
    k('v_lshl_add_u32 v7, v3, 4, v7')
    k('v_add_u32 v7, s39, v7')
    k('v_lshlrev_b32 v12, 4, v2')
    k('v_and_b32 v13, 1, v3')
    k('v_lshl_add_u32 v12, v13, 3, v12')
    k('s_lshl_b32 s38, s34, 11')
    k('v_add_u32 v12, s38, v12')
    k('s_mov_b32 s38, 24576')
    k('v_mul_lo_u32 v13, s38, v3')
    k('v_lshl_add_u32 v13, v2, 4, v13')
    k('v_add_u32 v13, s39, v13')
    k('v_add_u32 v13, 16384, v13')
    k('v_lshrrev_b32 v14, 2, v2')
    k('v_lshl_add_u32 v14, v3, 2, v14')
    k('v_lshlrev_b32 v14, 8, v14')
    k('v_and_b32 v15, 3, v2')
    k('v_lshl_add_u32 v14, v15, 3, v14')
    k('s_lshl_b32 s38, s36, 13')
    k('v_add_u32 v14, s38, v14')
    k('v_lshlrev_b32 v15, 14, v3')
    k('v_lshl_add_u32 v15, v2, 2, v15')
    k('s_lshl_b32 s38, s35, 9')
    k('s_lshl_b32 s52, s36, 7')
    k('s_add_u32 s38, s38, s52')
    k('v_add_u32 v15, s38, v15')
    k('v_lshlrev_b32 v16, 8, v3')
    k('v_lshl_add_u32 v16, v2, 2, v16')
    k('s_mul_i32 s38, s36, 1536')
    k('v_add_u32 v16, s38, v16')
    k('v_add_u32 v16, 65536, v16')
    k('v_xor_b32 v17, 16, v1')
    k('v_lshlrev_b32 v17, 2, v17')
    k('v_xor_b32 v18, 32, v1')
    k('v_lshlrev_b32 v18, 2, v18')
    k('v_lshrrev_b32 v19, 3, v1')
    k('v_and_b32 v20, 7, v1')
    k('v_lshlrev_b32 v21, 6, v19')
    k('v_lshl_add_u32 v21, v20, 3, v21')
    k('s_lshl_b32 s38, s36, 9')
    k('v_add_u32 v21, s38, v21')
    k('v_add_u32 v21, 65536, v21')
    k('v_lshlrev_b32 v22, 14, v19')
    k('v_lshl_add_u32 v22, v20, 2, v22')
    k('s_lshl_b32 s38, s36, 13')
    k('s_add_u32 s38, s38, s37')
    k('v_add_u32 v22, s38, v22')
    k('v_lshrrev_b32 v19, 2, v1')
    k('v_and_b32 v20, 3, v1')
    k('v_lshlrev_b32 v23, 7, v20')
    k('v_lshl_add_u32 v23, v19, 2, v23')
    k('v_add_u32 v23, %d, v23' % (65536 + 1024))
    k('v_lshlrev_b32 v24, 4, v19')
    k('v_lshl_add_u32 v24, v20, 2, v24')
    k('s_lshl_b32 s38, s37, 3')
    k('v_add_u32 v24, s38, v24')
    k('v_lshlrev_b32 v25, 7, v1')
    k('v_add_u32 v25, %d, v25' % (256*1024))
    k('v_mov_b32 v26, 1')
    k('s_mov_b32 s53, 0')
    KX, VX = 32, 64
    MEM = 96
    MP = 160
    loop = k.label('loop')
    k.put(loop)
    k('s_mul_i32 s54, s53, %d' % (32*24576))
    for i in range(8):
        k(f's_add_u32 s55, s54, {i*4*24576}')
        k('s_lshl_b32 s56, s36, 13')
        k(f's_add_u32 m0, s56, {i*1024}')
        k('buffer_load_dwordx4 v13, s[8:11], s55 offen lds')
    for tile in range(2):
        k(f's_add_u32 s55, s54, {tile*16*24576}')
        for u in range(4):
            r = KX + (tile*4+u)*4
            k(f'buffer_load_dwordx4 v[{r}:{r+3}], v6, s[8:11], s55 offen offset:{64*u}')
    first = k.label('first'); haveM = k.label('haveM')
    k('s_cmp_eq_u32 s53, 0')
    k(f's_cbranch_scc1 {first}')
    k('s_sub_u32 s55, s53, 1')
    k('s_lshl_b32 s56, s55, 11')
    k('s_mov_b64 s[60:61], exec')
    k('s_mov_b64 exec, 0xffff')
    poll = k.label('poll2'); pdone = k.label('p2d')
    k.put(poll)
    k('buffer_load_dword v27, v25, s[24:27], s56 offen sc1')
    k('s_waitcnt vmcnt(0)')
    k('v_cmp_le_u32 vcc, 16, v27')
    k('s_cmp_eq_u64 vcc, exec')
    k(f's_cbranch_scc1 {pdone}')
    k('s_sleep 1')
    k(f's_branch {poll}')
    k.put(pdone)
    k('s_mov_b64 exec, s[60:61]')
    k('s_lshl_b32 s56, s55, 15')
    for t in range(8):
        k(f'buffer_load_dwordx4 v[{MEM+8*t}:{MEM+8*t+3}], v4, s[20:23], s56 offen offset:{128*t} sc1')
        k(f'buffer_load_dwordx4 v[{MEM+8*t+4}:{MEM+8*t+7}], v4, s[20:23], s56 offen offset:{128*t+16} sc1')
    k('s_waitcnt vmcnt(16)')
    for a in range(8):
        k(f'ds_read_b64_tr_b16 v[{VX+4*a}:{VX+4*a+1}], v14 offset:{32*a}')
        k(f'ds_read_b64_tr_b16 v[{VX+4*a+2}:{VX+4*a+3}], v14 offset:{32*a+4096}')
    k('s_waitcnt vmcnt(0)')
    for t in range(8):
        for e in range(4):
            k(f'v_cvt_pk_bf16_f32 v{MP+4*t+e}, v{MEM+8*t+2*e}, v{MEM+8*t+2*e+1}')
    k(f's_branch {haveM}')
    k.put(first)
    for t in range(8):
        k(f'buffer_load_dwordx4 v[{MP+4*t}:{MP+4*t+3}], v5, s[28:31], 0 offen offset:{64*t}')
    k('s_waitcnt vmcnt(0)')
    for a in range(8):
        k(f'ds_read_b64_tr_b16 v[{VX+4*a}:{VX+4*a+1}], v14 offset:{32*a}')
        k(f'ds_read_b64_tr_b16 v[{VX+4*a+2}:{VX+4*a+3}], v14 offset:{32*a+4096}')
    k.put(haveM)
    for c in range(3):
        for e in range(4): k(f'v_mov_b32 v{96+4*c+e}, 0')
    k('s_nop 1')
    for t in range(8):
        for c in range(3):
            k(f'v_mfma_f32_16x16x32_bf16 v[{96+4*c}:{99+4*c}], v[{MP+4*t}:{MP+4*t+3}], a[{(c*8+t)*4}:{(c*8+t)*4+3}], v[{96+4*c}:{99+4*c}]')
    k('s_nop 7')
    k('s_nop 1')
    k('s_mov_b64 s[60:61], exec')
    k('s_mov_b64 exec, 0xffffffff')
    for c in range(3):
        for r in range(4):
            k(f'ds_write_b32 v16, v{96+4*c+r} offset:{c*512 + r*64}')
    k('s_mov_b64 exec, s[60:61]')
    k('s_waitcnt lgkmcnt(0)')
    k('s_barrier')
    w3 = k.label('w3'); w2 = k.label('w2'); rd = k.label('rd')
    k('s_cmp_eq_u32 s36, 3')
    k(f's_cbranch_scc1 {rd}')
    k('s_cmp_eq_u32 s36, 2')
    k(f's_cbranch_scc1 {w2}')
    for w in range(4):
        k(f'ds_read_b64 v[{108+2*w}:{109+2*w}], v21 offset:{w*1536}')
    k('s_waitcnt lgkmcnt(0)')
    for w in range(1, 4):
        k(f'v_add_f32 v108, v108, v{108+2*w}')
        k(f'v_add_f32 v109, v109, v{109+2*w}')
    k('v_cvt_pk_bf16_f32 v108, v108, v109')
    k('s_lshl_b32 s55, s53, 17')
    k('buffer_store_dword v108, v22, s[12:15], s55 offen sc1')
    k(f's_branch {rd}')
    k.put(w2)
    for w in range(4):
        k(f'ds_read_b32 v{108+2*w}, v23 offset:{w*1536}')
        k(f'ds_read_b32 v{109+2*w}, v23 offset:{w*1536+64}')
    k('s_waitcnt lgkmcnt(0)')
    for w in range(1, 4):
        k(f'v_add_f32 v108, v108, v{108+2*w}')
        k(f'v_add_f32 v109, v109, v{109+2*w}')
    k('v_cvt_pk_bf16_f32 v108, v108, v109')
    k('s_lshl_b32 s55, s53, 16')
    k('buffer_store_dword v108, v24, s[16:19], s55 offen sc1')
    k.put(rd)
    k('s_waitcnt vmcnt(0)')
    k('s_barrier')
    k('s_cmp_eq_u32 s53, 63')
    k(f's_cbranch_scc1 {done}')
    k('s_lshl_b32 s55, s53, 5')
    k('s_add_u32 s55, s55, s34')
    k('s_lshl_b32 s55, s55, 7')
    nsig = k.label('nsig')
    k('s_cmp_lg_u32 s36, 0')
    k(f's_cbranch_scc1 {nsig}')
    k('s_mov_b64 s[60:61], exec')
    k('s_mov_b64 exec, 1')
    k('v_mov_b32 v27, s55')
    k('buffer_atomic_add v26, v27, s[24:27], 0 offen')
    k('s_mov_b64 exec, s[60:61]')
    k.put(nsig)
    k('v_mov_b32 v27, s55')
    poll = k.label('poll1'); pdone = k.label('p1d')
    k.put(poll)
    k('buffer_load_dword v28, v27, s[24:27], 0 offen sc1')
    k('s_waitcnt vmcnt(0)')
    k('v_cmp_le_u32 vcc, 8, v28')
    k(f's_cbranch_vccnz {pdone}')
    k('s_sleep 1')
    k(f's_branch {poll}')
    k.put(pdone)
    k('s_lshl_b32 s55, s53, 17')
    for u in range(4):
        k(f'buffer_load_dwordx4 v[{96+4*u}:{99+4*u}], v7, s[12:15], s55 offen offset:{64*u} sc1')
    k('s_add_u32 s56, s55, 8192')
    for u in range(4):
        k(f'buffer_load_dwordx4 v[{112+4*u}:{115+4*u}], v7, s[12:15], s56 offen offset:{64*u} sc1')
    k('s_lshl_b32 s55, s53, 16')
    for a in range(8):
        k(f'buffer_load_dwordx2 v[{128+2*a}:{129+2*a}], v12, s[16:19], s55 offen offset:{256*a} sc1')
    for i in range(12): k(f'v_mov_b32 v{144+i}, 0')
    k('s_waitcnt vmcnt(12)')
    for u in range(4):
        for tile in range(2):
            r = KX + (tile*4+u)*4
            k(f'v_mfma_f32_16x16x32_bf16 v[{144+4*tile}:{147+4*tile}], v[{r}:{r+3}], v[{96+4*u}:{99+4*u}], v[{144+4*tile}:{147+4*tile}]')
    k('s_waitcnt vmcnt(8)')
    for u in range(4):
        k(f'v_mfma_f32_16x16x32_bf16 v[152:155], v[{112+4*u}:{115+4*u}], v[{96+4*u}:{99+4*u}], v[152:155]')
    k('s_nop 7')
    k('s_nop 1')
    k(f's_mov_b32 s55, {SCALE}')
    for i in range(0, 12, 2):
        a, b = 144+i, 145+i
        k(f'v_cvt_pk_bf16_f32 v27, v{a}, v{b}')
        k(f'v_lshlrev_b32 v{a}, 16, v27')
        k(f'v_and_b32 v{b}, 0xffff0000, v27')
        k(f'v_mul_f32 v{a}, s55, v{a}')
        k(f'v_mul_f32 v{b}, s55, v{b}')
        k(f'v_cvt_pk_bf16_f32 v27, v{a}, v{b}')
        k(f'v_lshlrev_b32 v{a}, 16, v27')
        k(f'v_and_b32 v{b}, 0xffff0000, v27')
    k('v_cmp_gt_u32 vcc, 2, v3')
    k('v_mov_b32 v28, 0xf149f2ca')
    k('s_nop 1')
    for i in range(8, 12):
        k(f'v_cndmask_b32 v{144+i}, v28, v{144+i}, vcc')
    k('v_max_f32 v27, v144, v145')
    for i in range(2, 12): k(f'v_max_f32 v27, v27, v{144+i}')
    for ad in (17, 18):
        k(f'ds_bpermute_b32 v28, v{ad}, v27')
        k('s_waitcnt lgkmcnt(0)')
        k('v_max_f32 v27, v27, v28')
    k(f's_mov_b32 s55, {LOG2E}')
    for i in range(12):
        k(f'v_sub_f32 v{144+i}, v{144+i}, v27')
        k(f'v_mul_f32 v{144+i}, s55, v{144+i}')
        k(f'v_exp_f32 v{144+i}, v{144+i}')
    k('s_nop 0')
    k('v_add_f32 v27, v144, v145')
    for i in range(2, 12): k(f'v_add_f32 v27, v27, v{144+i}')
    for ad in (17, 18):
        k(f'ds_bpermute_b32 v28, v{ad}, v27')
        k('s_waitcnt lgkmcnt(0)')
        k('v_add_f32 v27, v27, v28')
    k('v_rcp_f32 v27, v27')
    k('s_nop 0')
    for i in range(12): k(f'v_mul_f32 v{144+i}, v{144+i}, v27')
    k('v_cvt_pk_bf16_f32 v156, v144, v145')
    k('v_cvt_pk_bf16_f32 v157, v146, v147')
    k('v_cvt_pk_bf16_f32 v158, v148, v149')
    k('v_cvt_pk_bf16_f32 v159, v150, v151')
    k('v_cvt_pk_bf16_f32 v160, v152, v153')
    k('v_cvt_pk_bf16_f32 v161, v154, v155')
    k('v_mov_b32 v162, 0')
    k('v_mov_b32 v163, 0')
    k('s_waitcnt vmcnt(0)')
    k('v_cmp_gt_u32 vcc, 2, v3')
    k('s_nop 1')
    for a in range(8):
        k(f'v_cndmask_b32 v{164+4*a}, 0, v{128+2*a}, vcc')
        k(f'v_cndmask_b32 v{165+4*a}, 0, v{129+2*a}, vcc')
        k(f'v_mov_b32 v{166+4*a}, 0')
        k(f'v_mov_b32 v{167+4*a}, 0')
    for i in range(32): k(f'v_mov_b32 v{96+i}, 0')
    k('s_nop 1')
    for a in range(8):
        k(f'v_mfma_f32_16x16x32_bf16 v[{96+4*a}:{99+4*a}], v[{VX+4*a}:{VX+4*a+3}], v[156:159], v[{96+4*a}:{99+4*a}]')
    for a in range(8):
        k(f'v_mfma_f32_16x16x32_bf16 v[{96+4*a}:{99+4*a}], v[{164+4*a}:{167+4*a}], v[160:163], v[{96+4*a}:{99+4*a}]')
    k('s_nop 7')
    k('s_nop 1')
    for u in range(4):
        for h2 in range(2):
            a = 2*u + h2
            k(f'v_cvt_pk_bf16_f32 v{128+4*u+2*h2}, v{96+4*a}, v{97+4*a}')
            k(f'v_cvt_pk_bf16_f32 v{129+4*u+2*h2}, v{98+4*a}, v{99+4*a}')
    for i in range(8): k(f'v_mov_b32 v{144+i}, 0')
    k('s_nop 1')
    for u in range(4):
        for tile in range(2):
            aw = 96 + (tile*4+u)*4
            k(f'v_mfma_f32_16x16x32_bf16 v[{144+4*tile}:{147+4*tile}], v[{128+4*u}:{131+4*u}], a[{aw}:{aw+3}], v[{144+4*tile}:{147+4*tile}]')
    k('s_nop 7')
    k('s_nop 1')
    k('s_lshl_b32 s55, s53, 15')
    k('s_mov_b64 s[60:61], exec')
    k('s_mov_b64 exec, 0xffffffff')
    for tile in range(2):
        for r in range(4):
            k(f's_add_u32 s56, s55, {r*4096}')
            k(f'buffer_atomic_add_f32 v{144+4*tile+r}, v15, s[20:23], s56 offen offset:{64*tile}')
    k('s_mov_b64 exec, s[60:61]')
    k('s_waitcnt vmcnt(0)')
    k('s_barrier')
    nsig = k.label('nsig2')
    k('s_cmp_lg_u32 s36, 0')
    k(f's_cbranch_scc1 {nsig}')
    k('s_lshl_b32 s55, s53, 11')
    k('s_and_b32 s56, s2, 15')
    k('s_lshl_b32 s56, s56, 7')
    k('s_add_u32 s55, s55, s56')
    k(f's_add_u32 s55, s55, {256*1024}')
    k('s_mov_b64 s[60:61], exec')
    k('s_mov_b64 exec, 1')
    k('v_mov_b32 v27, s55')
    k('buffer_atomic_add v26, v27, s[24:27], 0 offen')
    k('s_mov_b64 exec, s[60:61]')
    k.put(nsig)
    k('s_add_u32 s53, s53, 1')
    k(f's_branch {loop}')
    k.put(done)
    return k

def gen_att(name, qkv_off, mqkv_off, ox_off):
    k = Kern(name, nvgpr=160, nsgpr=96)
    k.grid, k.block, k.lds = 512, 256, 4*8192
    done = k.label('done')
    k('s_cmp_ge_u32 s2, 512')
    k(f's_cbranch_scc1 {done}')
    k(f's_load_dwordx2 s[4:5], s[0:1], {ARG["ws"]}')
    k('v_and_b32 v1, 63, v0')
    k('v_lshrrev_b32 v2, 6, v0')
    k('s_nop 0')
    k('v_readfirstlane_b32 s36, v2')
    k('s_lshr_b32 s33, s2, 3')
    k('s_and_b32 s34, s2, 7')
    k('s_lshl_b32 s34, s34, 2')
    k('s_add_u32 s34, s34, s36')
    k('v_and_b32 v2, 31, v1')
    k('v_lshrrev_b32 v3, 5, v1')
    k('s_waitcnt lgkmcnt(0)')
    srd_off(k, 8, 4, 5, qkv_off, 2048*24576)
    srd_off(k, 12, 4, 5, mqkv_off, 8*1024*1024)
    srd_off(k, 16, 4, 5, mqkv_off + 8*1024*1024, 4*1024*1024)
    srd_off(k, 20, 4, 5, ox_off, 2048*8192)
    k('s_mul_i32 s40, s33, %d' % (32*24576))
    k('s_lshl_b32 s41, s34, 8')
    k('s_add_u32 s40, s40, s41')
    k('s_mov_b32 s42, 24576')
    k('v_mul_lo_u32 v4, s42, v2')
    k('v_lshl_add_u32 v4, v3, 4, v4')
    k('s_add_u32 s43, s40, 8192')
    for t in range(8):
        k(f'buffer_load_dwordx4 v[{16+4*t}:{19+4*t}], v4, s[8:11], s40 offen offset:{32*t}')
    for t in range(8):
        k(f'buffer_load_dwordx4 v[{48+4*t}:{51+4*t}], v4, s[8:11], s43 offen offset:{32*t}')
    k('v_and_b32 v5, 7, v2')
    k('v_lshlrev_b32 v5, 14, v5')
    k('v_lshl_add_u32 v5, v3, 4, v5')
    k('s_lshl_b32 s44, s33, 17')
    k('s_add_u32 s44, s44, s41')
    k('s_add_u32 s44, s44, 8192')
    for t in range(8):
        k(f'buffer_load_dwordx4 v[{80+4*t}:{83+4*t}], v5, s[12:15], s44 offen offset:{32*t}')
    k('v_lshrrev_b32 v6, 4, v1')
    k('v_mul_lo_u32 v6, s42, v6')
    k('v_and_b32 v7, 15, v1')
    k('v_lshl_add_u32 v6, v7, 4, v6')
    k('s_add_u32 s45, s40, 16384')
    k('s_lshl_b32 s46, s36, 13')
    for i in range(8):
        k(f's_add_u32 s47, s45, {i*4*24576}')
        k(f's_add_u32 m0, s46, {i*1024}')
        k('buffer_load_dwordx4 v6, s[8:11], s47 offen lds')
    k('v_lshlrev_b32 v8, 4, v2')
    k('v_lshl_add_u32 v8, v3, 3, v8')
    k('s_lshl_b32 s47, s33, 16')
    k('s_lshl_b32 s48, s34, 11')
    k('s_add_u32 s47, s47, s48')
    for a in range(4):
        k(f'buffer_load_dwordx2 v[{112+2*a}:{113+2*a}], v8, s[16:19], s47 offen offset:{512*a}')
    for i in range(32): k(f'v_mov_b32 v{120+i}, 0')
    k('s_waitcnt vmcnt(12)')
    for t in range(8):
        k(f'v_mfma_f32_32x32x16_bf16 v[120:135], v[{48+4*t}:{51+4*t}], v[{16+4*t}:{19+4*t}], v[120:135]')
        k(f'v_mfma_f32_32x32x16_bf16 v[136:151], v[{80+4*t}:{83+4*t}], v[{16+4*t}:{19+4*t}], v[136:151]')
    k('s_nop 15')
    k('s_nop 3')
    k(f's_mov_b32 s55, {SCALE}')
    regs = list(range(120, 140))
    for i in range(0, 20, 2):
        a, b = regs[i], regs[i+1]
        k(f'v_cvt_pk_bf16_f32 v9, v{a}, v{b}')
        k(f'v_lshlrev_b32 v{a}, 16, v9')
        k(f'v_and_b32 v{b}, 0xffff0000, v9')
        k(f'v_mul_f32 v{a}, s55, v{a}')
        k(f'v_mul_f32 v{b}, s55, v{b}')
        k(f'v_cvt_pk_bf16_f32 v9, v{a}, v{b}')
        k(f'v_lshlrev_b32 v{a}, 16, v9')
        k(f'v_and_b32 v{b}, 0xffff0000, v9')
    k('v_mov_b32 v10, 0xf149f2ca')
    k('v_lshlrev_b32 v11, 2, v3')
    k('v_sub_u32 v11, v2, v11')
    for r in range(16):
        kk = 8*(r >> 2) + (r & 3)
        k(f'v_cmp_le_i32 vcc, {kk}, v11')
        k('s_nop 1')
        k(f'v_cndmask_b32 v{120+r}, v10, v{120+r}, vcc')
    k('v_max_f32 v9, v120, v121')
    for i in range(2, 20): k(f'v_max_f32 v9, v9, v{regs[i]}')
    k('v_xor_b32 v12, 32, v1')
    k('v_lshlrev_b32 v12, 2, v12')
    k('ds_bpermute_b32 v10, v12, v9')
    k('s_waitcnt lgkmcnt(0)')
    k('v_max_f32 v9, v9, v10')
    k(f's_mov_b32 s55, {LOG2E}')
    for r in regs:
        k(f'v_sub_f32 v{r}, v{r}, v9')
        k(f'v_mul_f32 v{r}, s55, v{r}')
        k(f'v_exp_f32 v{r}, v{r}')
    k('s_nop 0')
    k('v_add_f32 v9, v120, v121')
    for i in range(2, 20): k(f'v_add_f32 v9, v9, v{regs[i]}')
    k('ds_bpermute_b32 v10, v12, v9')
    k('s_waitcnt lgkmcnt(0)')
    k('v_add_f32 v9, v9, v10')
    k('v_rcp_f32 v9, v9')
    k('s_nop 0')
    for r in regs: k(f'v_mul_f32 v{r}, v{r}, v9')
    for t in range(2):
        for e in range(4):
            k(f'v_cvt_pk_bf16_f32 v{16+4*t+e}, v{120+8*t+2*e}, v{121+8*t+2*e}')
    k('v_cvt_pk_bf16_f32 v24, v136, v137')
    k('v_cvt_pk_bf16_f32 v25, v138, v139')
    k('v_mov_b32 v26, 0')
    k('v_mov_b32 v27, 0')
    k('v_and_b32 v9, 15, v1')
    k('v_lshrrev_b32 v10, 2, v9')
    k('v_lshl_add_u32 v10, v3, 2, v10')
    k('v_lshlrev_b32 v10, 8, v10')
    k('v_and_b32 v9, 3, v9')
    k('v_lshl_add_u32 v10, v9, 3, v10')
    k('v_bfe_u32 v9, v1, 4, 1')
    k('v_lshl_add_u32 v10, v9, 5, v10')
    k('v_add_u32 v10, s46, v10')
    k('s_waitcnt vmcnt(0)')
    for a in range(4):
        for t in range(2):
            r = 48 + (a*2+t)*4
            k(f'ds_read_b64_tr_b16 v[{r}:{r+1}], v10 offset:{t*4096 + a*64}')
            k(f'ds_read_b64_tr_b16 v[{r+2}:{r+3}], v10 offset:{t*4096 + 2048 + a*64}')
    for a in range(4):
        k(f'v_mov_b32 v{80+4*a}, v{112+2*a}')
        k(f'v_mov_b32 v{81+4*a}, v{113+2*a}')
        k(f'v_mov_b32 v{82+4*a}, 0')
        k(f'v_mov_b32 v{83+4*a}, 0')
    for i in range(64): k(f'v_mov_b32 v{96+i}, 0')
    k('s_waitcnt lgkmcnt(0)')
    for a in range(4):
        o = 96 + 16*a
        for t in range(2):
            r = 48 + (a*2+t)*4
            k(f'v_mfma_f32_32x32x16_bf16 v[{o}:{o+15}], v[{r}:{r+3}], v[{16+4*t}:{19+4*t}], v[{o}:{o+15}]')
        k(f'v_mfma_f32_32x32x16_bf16 v[{o}:{o+15}], v[{80+4*a}:{83+4*a}], v[24:27], v[{o}:{o+15}]')
    k('s_nop 15')
    k('s_nop 3')
    k('v_lshlrev_b32 v4, 13, v2')
    k('v_lshl_add_u32 v4, v3, 3, v4')
    k('s_lshl_b32 s40, s33, 18')
    k('s_add_u32 s40, s40, s41')
    for a in range(4):
        for q in range(4):
            o = 96 + 16*a + 4*q
            k(f'v_cvt_pk_bf16_f32 v8, v{o}, v{o+1}')
            k(f'v_cvt_pk_bf16_f32 v9, v{o+2}, v{o+3}')
            k(f'buffer_store_dwordx2 v[8:9], v4, s[20:23], s40 offen offset:{(32*a+8*q)*2}')
            k('s_nop 1')
    k.put(done)
    return k
```

```python
import sys, os
sys.path.insert(0, os.path.dirname(__file__))
from asmlib import *
from k_ln import gen_ln
from k_gemm import gen_gemm

MB = 1 << 20
WS_XN, WS_QKV, WS_OX, WS_X1, WS_H, WS_X2, WS_MQKV, WS_ACC, WS_FLAG = 0, 4*MB, 52*MB, 68*MB, 72*MB, 88*MB, 92*MB, 108*MB, 116*MB

HEADER = open('interleave_layers__memory_aug_recurrent_mem_tr__mixer_channel_mlp__prompt.s.ref').read().split('; Override launch')[0]

def build(path, upto=None):
    kerns = {}
    launches = []
    def add(k, grid=None, block=None, lds=None):
        kerns[k.name] = k
        launches.append((k.name, grid or k.grid, block or k.block, lds if lds is not None else getattr(k, 'lds', 0)))
    def relaunch(k):
        launches.append((k.name, k.grid, k.block, getattr(k, 'lds', 0)))
    ln1a = gen_ln('ln1a_kernel', 'arg', ARG['x'], WS_XN, False); ln1a.grid, ln1a.block = 512, 256
    ln1b = gen_ln('ln1b_kernel', 'ws', WS_X2, WS_XN, False); ln1b.grid, ln1b.block = 512, 256
    ln2 = gen_ln('ln2_kernel', 'ws', WS_X1, WS_XN, True); ln2.grid, ln2.block = 512, 256
    gq = gen_gemm('gqkv_kernel', 2048, 12288, 1024, WS_XN, [ARG['Wq'], ARG['Wk'], ARG['Wv']], 4096, WS_QKV, 'plain', 4, 2, 2, 2)
    goa = gen_gemm('goa_kernel', 2048, 1024, 4096, WS_OX, [ARG['Wo']], 1024, WS_X1, 'res', 4, 1, 1, 2, res_kind='arg', res_off=ARG['x'])
    gob = gen_gemm('gob_kernel', 2048, 1024, 4096, WS_OX, [ARG['Wo']], 1024, WS_X1, 'res', 4, 1, 1, 2, res_kind='ws', res_off=WS_X2)
    g1 = gen_gemm('g1_kernel', 2048, 3584, 1024, WS_XN, [ARG['w1']], 3584, WS_H, 'bias_gelu', 4, 1, 2, 4*0+4, bias_slot=ARG['b1'])
    g2a = gen_gemm('g2a_kernel', 2048, 1024, 3584, WS_H, [ARG['w2']], 1024, WS_X2, 'bias_res', 4, 1, 1, 2, res_kind='ws', res_off=WS_X1, bias_slot=ARG['b2'])
    g2b = gen_gemm('g2b_kernel', 2048, 1024, 3584, WS_H, [ARG['w2']], 1024, ARG['out'], 'bias_res', 4, 1, 1, 2, res_kind='ws', res_off=WS_X1, bias_slot=ARG['b2'], out_kind='arg')
    try:
        from k_rec import gen_att, gen_zero
        from k_rec4 import gen_rec4 as gen_rec
        have_rec = True
    except ImportError:
        have_rec = False
    seq = []
    for layer in range(2):
        add(ln1a if layer == 0 else ln1b)
        if layer == 0: add(gq)
        else: relaunch(gq)
        if have_rec:
            if layer == 0:
                zk = gen_zero('zero_kernel', WS_ACC, WS_FLAG)
                rk = gen_rec('rec_kernel', WS_QKV, WS_MQKV, WS_ACC, WS_FLAG, prof=bool(os.environ.get('PROF')))
                ak = gen_att('att_kernel', WS_QKV, WS_MQKV, WS_OX)
            if layer == 0:
                add(zk); add(rk); add(ak)
            else:
                relaunch(zk); relaunch(rk); relaunch(ak)
        add(goa if layer == 0 else gob)
        if layer == 0:
            add(ln2); add(g1); add(g2a)
        else:
            relaunch(ln2); relaunch(g1); add(g2b)
    if upto is not None:
        launches = launches[:upto]
    used = []
    for l in launches:
        if l[0] not in used: used.append(l[0])
    out = [HEADER.rstrip('\n')]
    for nm, g, b, lds in launches:
        out.append(f'; @launch kernel={nm} grid=({g},1,1) block=({b},1,1) lds={lds}')
    out.append('.amdgcn_target "amdgcn-amd-amdhsa--gfx950"')
    out.append('.text')
    for nm in used:
        out.append(kerns[nm].text())
    out.append('.section .rodata,"a"')
    for nm in used:
        out.append('.p2align 6')
        out.append(kerns[nm].desc())
    open(path, 'w').write('\n'.join(out) + '\n')
    return launches

if __name__ == '__main__':
    upto = int(sys.argv[1]) if len(sys.argv) > 1 else None
    p = sys.argv[2] if len(sys.argv) > 2 else 'interleave_layers__memory_aug_recurrent_mem_tr__mixer_channel_mlp__prompt.s'
    l = build(p, upto)
    print(len(l), 'launches')
```

```python
from asmlib import *
import os
EXPER = bool(os.environ.get('EXPER'))

def gen_zero(name, acc_off, flag_off):
    k = Kern(name, nvgpr=16)
    k.grid, k.block = 1024, 256
    done = k.label('done')
    k('s_cmp_ge_u32 s2, 1024')
    k(f's_cbranch_scc1 {done}')
    k(f's_load_dwordx2 s[4:5], s[0:1], {ARG["ws"]}')
    k('s_waitcnt lgkmcnt(0)')
    srd_off(k, 8, 4, 5, acc_off, 2*1024*1024)
    srd_off(k, 12, 4, 5, flag_off, 2*1024*1024)
    k('s_lshl_b32 s3, s2, 8')
    k('v_add_u32 v1, s3, v0')
    k('v_lshlrev_b32 v1, 4, v1')
    for i in range(4): k(f'v_mov_b32 v{4+i}, 0')
    k('buffer_store_dwordx4 v[4:7], v1, s[8:11], 0 offen')
    k(f'v_subrev_u32 v1, {2*1024*1024}, v1')
    k('buffer_store_dwordx4 v[4:7], v1, s[12:15], 0 offen')
    k.put(done)
    return k

SCALE = '0x3db504f3'
LOG2E = '0x3fb8aa3b'

def gen_rec(name, qkv_off, mqkv_off, acc_off, flag_off, prof=False):
    k = Kern(name, nvgpr=200, nagpr=128, nsgpr=96)
    k.grid, k.block, k.lds = 256, 256, 131072
    done = k.label('done')
    def stamp(i):
        if prof:
            k('s_memtime s[82:83]')
            k('s_waitcnt lgkmcnt(0)')
            k(f's_mov_b32 s{64+i}, s82')
    k('s_cmp_ge_u32 s2, 256')
    k(f's_cbranch_scc1 {done}')
    k(f's_load_dwordx2 s[4:5], s[0:1], {ARG["ws"]}')
    k(f's_load_dwordx2 s[6:7], s[0:1], {ARG["mem0"]}')
    k(f's_load_dwordx2 s[40:41], s[0:1], {ARG["Wq"]}')
    k(f's_load_dwordx2 s[42:43], s[0:1], {ARG["Wk"]}')
    k(f's_load_dwordx2 s[44:45], s[0:1], {ARG["Wv"]}')
    k(f's_load_dwordx2 s[46:47], s[0:1], {ARG["Wo"]}')
    k('s_lshr_b32 s34, s2, 3')
    k('s_and_b32 s35, s2, 7')
    k('v_and_b32 v1, 63, v0')
    k('v_lshrrev_b32 v2, 6, v0')
    k('s_nop 0')
    k('v_readfirstlane_b32 s36, v2')
    k('v_and_b32 v2, 15, v1')
    k('v_lshrrev_b32 v3, 4, v1')
    k('s_waitcnt lgkmcnt(0)')
    k('s_lshl_b32 s37, s34, 8')
    k('s_lshl_b32 s38, s35, 5')
    k('s_add_u32 s37, s37, s38')
    for c in range(3):
        k(f's_add_u32 s{8+4*c}, s{40+2*c}, s37')
        k(f's_addc_u32 s{9+4*c}, s{41+2*c}, 0')
        k(f's_and_b32 s{9+4*c}, s{9+4*c}, 0xffff')
        k(f's_sub_u32 s{10+4*c}, {1024*8192}, s37')
        k(f's_mov_b32 s{11+4*c}, 0x00020000')
    k('s_lshl_b32 s38, s34, 18')
    k('s_lshl_b32 s39, s35, 8')
    k('s_add_u32 s38, s38, s39')
    k('s_add_u32 s20, s46, s38')
    k('s_addc_u32 s21, s47, 0')
    k('s_and_b32 s21, s21, 0xffff')
    k(f's_sub_u32 s22, {4096*2048}, s38')
    k('s_mov_b32 s23, 0x00020000')
    k('v_lshrrev_b32 v4, 1, v1')
    k('v_lshlrev_b32 v4, 13, v4')
    k('v_and_b32 v5, 1, v1')
    k('v_lshl_add_u32 v4, v5, 4, v4')
    for c in range(3):
        for i in range(8):
            k(f's_lshl_b32 s38, s36, 3')
            k(f's_add_u32 s38, s38, {i}')
            k('s_lshl_b32 s39, s38, 18')
            k('s_lshl_b32 s38, s38, 10')
            k(f's_add_u32 m0, s38, {c*32768}')
            k(f'buffer_load_dwordx4 v4, s[{8+4*c}:{11+4*c}], s39 offen lds')
    k('v_lshrrev_b32 v4, 4, v1')
    k('v_lshlrev_b32 v4, 11, v4')
    k('v_lshl_add_u32 v4, v2, 4, v4')
    for i in range(8):
        k(f's_lshl_b32 s38, s36, 3')
        k(f's_add_u32 s38, s38, {i}')
        k('s_lshl_b32 s39, s38, 13')
        k('s_lshl_b32 s38, s38, 10')
        k(f's_add_u32 m0, s38, {98304}')
        k(f'buffer_load_dwordx4 v4, s[20:23], s39 offen lds')
    k('s_waitcnt vmcnt(0)')
    k('s_barrier')
    k('v_lshrrev_b32 v4, 2, v2')
    k('v_and_b32 v5, 3, v2')
    k('v_lshl_add_u32 v4, v3, 2, v4')
    k('v_lshlrev_b32 v4, 5, v4')
    k('v_lshl_add_u32 v4, v5, 3, v4')
    k('s_lshl_b32 s38, s36, 13')
    k('v_add_u32 v4, s38, v4')
    for c in range(3):
        if c == 2: k('v_add_u32 v4, 65536, v4')
        for t in range(8):
            k(f'ds_read_b64_tr_b16 v[8:9], v4 offset:{(c&1)*32768 + t*1024}')
            k(f'ds_read_b64_tr_b16 v[10:11], v4 offset:{(c&1)*32768 + t*1024 + 512}')
            k('s_waitcnt lgkmcnt(0)')
            for e in range(4):
                k(f'v_accvgpr_write_b32 a{(c*8+t)*4+e}, v{8+e}')
    k('v_lshrrev_b32 v4, 2, v2')
    k('v_lshl_add_u32 v4, v3, 2, v4')
    k('v_lshlrev_b32 v4, 8, v4')
    k('v_lshl_add_u32 v4, v5, 3, v4')
    k('s_lshl_b32 s38, s36, 6')
    k('s_add_u32 s38, s38, 98304')
    k('v_add_u32 v4, s38, v4')
    for tile in range(2):
        for u in range(4):
            k(f'ds_read_b64_tr_b16 v[8:9], v4 offset:{u*8192 + tile*32}')
            k(f'ds_read_b64_tr_b16 v[10:11], v4 offset:{u*8192 + tile*32 + 4096}')
            k('s_waitcnt lgkmcnt(0)')
            for e in range(4):
                k(f'v_accvgpr_write_b32 a{96+(tile*4+u)*4+e}, v{8+e}')
    k('s_barrier')
    srd_off(k, 8, 4, 5, qkv_off, 2048*24576)
    srd_off(k, 12, 4, 5, mqkv_off, 8*1024*1024)
    srd_off(k, 16, 4, 5, mqkv_off + 8*1024*1024, 4*1024*1024)
    srd_off(k, 20, 4, 5, acc_off, 2*1024*1024)
    srd_off(k, 24, 4, 5, flag_off, 512*1024)
    srd(k, 28, 6, 7, 16384)
    srd_off(k, 76, 4, 5, flag_off + 1024*1024, 786432)
    k('s_add_u32 s48, s4, %d' % acc_off)
    k('s_addc_u32 s49, s5, 0')
    k('s_add_u32 s50, s4, %d' % flag_off)
    k('s_addc_u32 s51, s5, 0')
    k('v_and_b32 v4, 7, v2')
    k('v_lshlrev_b32 v4, 12, v4')
    k('v_lshl_add_u32 v4, v3, 4, v4')
    k('s_lshl_b32 s38, s36, 10')
    k('v_add_u32 v4, s38, v4')
    k('v_lshrrev_b32 v5, 1, v4')
    k('s_mov_b32 s38, 24576')
    k('v_mul_lo_u32 v6, s38, v2')
    k('v_lshl_add_u32 v6, v3, 4, v6')
    k('s_lshl_b32 s39, s34, 8')
    k('v_add_u32 v6, s39, v6')
    k('v_add_u32 v6, 8192, v6')
    k('v_and_b32 v7, 7, v2')
    k('v_lshlrev_b32 v7, 14, v7')
    k('v_lshl_add_u32 v7, v3, 4, v7')
    k('v_add_u32 v7, s39, v7')
    k('v_lshlrev_b32 v12, 4, v2')
    k('v_and_b32 v13, 1, v3')
    k('v_lshl_add_u32 v12, v13, 3, v12')
    k('s_lshl_b32 s38, s34, 11')
    k('v_add_u32 v12, s38, v12')
    k('s_mov_b32 s38, 24576')
    k('v_mul_lo_u32 v13, s38, v3')
    k('v_lshl_add_u32 v13, v2, 4, v13')
    k('v_add_u32 v13, s39, v13')
    k('v_add_u32 v13, 16384, v13')
    k('v_lshrrev_b32 v14, 2, v2')
    k('v_lshl_add_u32 v14, v3, 2, v14')
    k('v_lshlrev_b32 v14, 8, v14')
    k('v_and_b32 v15, 3, v2')
    k('v_lshl_add_u32 v14, v15, 3, v14')
    k('s_lshl_b32 s38, s36, 13')
    k('v_add_u32 v14, s38, v14')
    k('v_lshlrev_b32 v15, 14, v3')
    k('v_lshl_add_u32 v15, v2, 2, v15')
    k('s_lshl_b32 s38, s35, 9')
    k('s_lshl_b32 s52, s36, 7')
    k('s_add_u32 s38, s38, s52')
    k('v_add_u32 v15, s38, v15')
    k('v_lshlrev_b32 v16, 8, v3')
    k('v_lshl_add_u32 v16, v2, 2, v16')
    k('s_mul_i32 s38, s36, 1536')
    k('v_add_u32 v16, s38, v16')
    k('v_add_u32 v16, 65536, v16')
    k('v_xor_b32 v17, 16, v1')
    k('v_lshlrev_b32 v17, 2, v17')
    k('v_xor_b32 v18, 32, v1')
    k('v_lshlrev_b32 v18, 2, v18')
    k('v_lshrrev_b32 v19, 3, v1')
    k('v_and_b32 v20, 7, v1')
    k('v_lshlrev_b32 v21, 6, v19')
    k('v_lshl_add_u32 v21, v20, 3, v21')
    k('s_lshl_b32 s38, s36, 9')
    k('v_add_u32 v21, s38, v21')
    k('v_add_u32 v21, 65536, v21')
    k('v_lshlrev_b32 v22, 14, v19')
    k('v_lshl_add_u32 v22, v20, 2, v22')
    k('s_lshl_b32 s38, s36, 13')
    k('s_add_u32 s38, s38, s37')
    k('v_add_u32 v22, s38, v22')
    k('v_lshrrev_b32 v19, 2, v1')
    k('v_and_b32 v20, 3, v1')
    k('v_lshlrev_b32 v23, 7, v20')
    k('v_lshl_add_u32 v23, v19, 2, v23')
    k('v_add_u32 v23, %d, v23' % (65536 + 1024))
    k('v_lshlrev_b32 v24, 4, v19')
    k('v_lshl_add_u32 v24, v20, 2, v24')
    k('s_lshl_b32 s38, s37, 3')
    k('v_add_u32 v24, s38, v24')
    k('v_lshrrev_b32 v19, 3, v1')
    k('v_and_b32 v20, 7, v1')
    k('s_lshl_b32 s38, s36, 3')
    k('v_add_u32 v19, s38, v19')
    k('v_lshlrev_b32 v19, 5, v19')
    k('v_add_u32 v19, s34, v19')
    k('v_lshlrev_b32 v19, 9, v19')
    k('s_lshl_b32 s38, s35, 3')
    k('v_add_u32 v20, s38, v20')
    k('v_lshl_add_u32 v29, v20, 3, v19')
    k('v_lshrrev_b32 v19, 2, v1')
    k('v_and_b32 v20, 3, v1')
    k('v_lshlrev_b32 v19, 5, v19')
    k('v_lshl_add_u32 v19, v20, 3, v19')
    k('s_lshl_b32 s38, s37, 4')
    k('s_add_u32 s38, s38, 262144')
    k('v_add_u32 v30, s38, v19')
    k('v_and_b32 v19, 7, v2')
    k('v_lshlrev_b32 v19, 5, v19')
    k('v_add_u32 v19, s34, v19')
    k('v_lshlrev_b32 v19, 9, v19')
    k('v_lshl_add_u32 v31, v3, 5, v19')
    k('v_lshlrev_b32 v19, 5, v2')
    k('v_and_b32 v20, 1, v3')
    k('v_lshl_add_u32 v19, v20, 4, v19')
    k('s_lshl_b32 s38, s34, 12')
    k('s_add_u32 s38, s38, 262144')
    k('v_add_u32 v8, s38, v19')
    k('v_and_b32 v19, 7, v1')
    k('v_bfe_u32 v20, v1, 3, 2')
    k('v_lshlrev_b32 v27, 3, v20')
    k('v_add_u32 v27, 7, v27')
    k('v_lshlrev_b32 v27, 5, v27')
    k('v_add_u32 v27, s34, v27')
    k('v_lshlrev_b32 v27, 9, v27')
    k('v_lshl_add_u32 v27, v19, 6, v27')
    k('v_add_u32 v27, 56, v27')
    k('v_lshlrev_b32 v28, 9, v19')
    k('s_lshl_b32 s38, s34, 12')
    k('s_add_u32 s38, s38, %d' % (262144 + 15*32 + 24))
    k('v_add_u32 v28, s38, v28')
    k('v_cmp_gt_u32 vcc, 2, v20')
    k('s_nop 1')
    k('v_cndmask_b32 v9, v28, v27, vcc')
    k('v_lshlrev_b32 v10, 4, v1')
    k('v_and_b32 v11, 7, v2')
    k('v_lshlrev_b32 v11, 10, v11')
    k('v_lshl_add_u32 v11, v3, 4, v11')
    k('s_lshl_b32 s38, s36, 13')
    k('s_add_u32 s38, s38, 98304')
    k('v_add_u32 v11, s38, v11')
    k('v_lshlrev_b32 v25, 7, v1')
    k('v_add_u32 v25, %d, v25' % (256*1024))
    k('v_mov_b32 v26, 1')
    k('s_mov_b32 s53, 0')
    KX, VX = 32, 64
    MEM = 96
    MP = 160
    loop = k.label('loop')
    k.put(loop)
    stamp(0)
    k('s_mul_i32 s54, s53, %d' % (32*24576))
    for i in range(8):
        k(f's_add_u32 s55, s54, {i*4*24576}')
        k('s_lshl_b32 s56, s36, 13')
        k(f's_add_u32 m0, s56, {i*1024}')
        k('buffer_load_dwordx4 v13, s[8:11], s55 offen lds')
    for tile in range(2):
        k(f's_add_u32 s55, s54, {tile*16*24576}')
        for u in range(4):
            r = KX + (tile*4+u)*4
            k(f'buffer_load_dwordx4 v[{r}:{r+3}], v6, s[8:11], s55 offen offset:{64*u}')
    first = k.label('first'); haveM = k.label('haveM')
    k('s_cmp_eq_u32 s53, 0')
    k(f's_cbranch_scc1 {first}')
    k('s_sub_u32 s55, s53, 1')
    k('s_lshl_b32 s56, s55, 11')
    poll = k.label('poll2'); pdone = k.label('p2d'); pskip = k.label('p2s')
    k('s_cmp_lg_u32 s36, 0')
    k(f's_cbranch_scc1 {pskip}')
    k('s_mov_b64 s[60:61], exec')
    k('s_mov_b64 exec, 0xffff')
    k.put(poll)
    k('buffer_load_dword v27, v25, s[24:27], s56 offen sc1')
    k('s_waitcnt vmcnt(0)')
    k('v_cmp_le_u32 vcc, 16, v27')
    k('s_cmp_eq_u64 vcc, exec')
    k(f's_cbranch_scc1 {pdone}')
    k(f's_branch {poll}')
    k.put(pdone)
    k('s_mov_b64 exec, s[60:61]')
    k.put(pskip)
    k('s_barrier')
    stamp(1)
    k('s_lshl_b32 s56, s55, 15')
    k('s_mov_b64 s[60:61], exec')
    k('s_mov_b32 s62, 0x00ff00ff')
    k('s_mov_b32 s63, 0x00ff00ff')
    k('s_mov_b64 exec, s[62:63]')
    for t in range(8):
        k(f'buffer_load_dwordx4 v[{MEM+8*t}:{MEM+8*t+3}], v4, s[20:23], s56 offen offset:{128*t}')
        k(f'buffer_load_dwordx4 v[{MEM+8*t+4}:{MEM+8*t+7}], v4, s[20:23], s56 offen offset:{128*t+64}')
    k('s_mov_b64 exec, s[60:61]')
    if EXPER: stamp(2)
    k('s_waitcnt vmcnt(8)')
    for a in range(8):
        k(f'ds_read_b64_tr_b16 v[{VX+4*a}:{VX+4*a+1}], v14 offset:{32*a}')
        k(f'ds_read_b64_tr_b16 v[{VX+4*a+2}:{VX+4*a+3}], v14 offset:{32*a+4096}')
    if EXPER: stamp(3)
    k('s_waitcnt vmcnt(0)')
    if EXPER: stamp(4)
    for t in range(8):
        for e in range(4):
            k(f'v_cvt_pk_bf16_f32 v{MP+4*t+e}, v{MEM+8*t+2*e}, v{MEM+8*t+2*e+1}')
    k(f's_branch {haveM}')
    k.put(first)
    for t in range(8):
        k(f'buffer_load_dwordx2 v[{MP+4*t}:{MP+4*t+1}], v5, s[28:31], 0 offen offset:{64*t}')
        k(f'buffer_load_dwordx2 v[{MP+4*t+2}:{MP+4*t+3}], v5, s[28:31], 0 offen offset:{64*t+32}')
    k('s_waitcnt vmcnt(0)')
    for a in range(8):
        k(f'ds_read_b64_tr_b16 v[{VX+4*a}:{VX+4*a+1}], v14 offset:{32*a}')
        k(f'ds_read_b64_tr_b16 v[{VX+4*a+2}:{VX+4*a+3}], v14 offset:{32*a+4096}')
    k.put(haveM)
    stamp(5 if EXPER else 2)
    for c in range(3):
        for e in range(4): k(f'v_mov_b32 v{96+4*c+e}, 0')
    k('s_nop 1')
    for t in range(8):
        for c in range(3):
            k(f'v_mfma_f32_16x16x32_bf16 v[{96+4*c}:{99+4*c}], v[{MP+4*t}:{MP+4*t+3}], a[{(c*8+t)*4}:{(c*8+t)*4+3}], v[{96+4*c}:{99+4*c}]')
    k('s_nop 7')
    k('s_nop 1')
    k('s_mov_b64 s[60:61], exec')
    k('s_mov_b64 exec, 0xffffffff')
    for c in range(3):
        for r in range(4):
            k(f'ds_write_b32 v16, v{96+4*c+r} offset:{c*512 + r*64}')
    k('s_mov_b64 exec, s[60:61]')
    k('s_waitcnt lgkmcnt(0)')
    k('s_barrier')
    w3 = k.label('w3'); w2 = k.label('w2'); rd = k.label('rd')
    k('s_cmp_eq_u32 s36, 3')
    k(f's_cbranch_scc1 {rd}')
    k('s_cmp_eq_u32 s36, 2')
    k(f's_cbranch_scc1 {w2}')
    for w in range(4):
        k(f'ds_read_b64 v[{108+2*w}:{109+2*w}], v21 offset:{w*1536}')
    k('s_waitcnt lgkmcnt(0)')
    for w in range(1, 4):
        k(f'v_add_f32 v108, v108, v{108+2*w}')
        k(f'v_add_f32 v109, v109, v{109+2*w}')
    k('v_cvt_pk_bf16_f32 v108, v108, v109')
    k('s_lshl_b32 s55, s53, 17')
    k('buffer_store_dword v108, v22, s[12:15], s55 offen sc1')
    k(f's_branch {rd}')
    k.put(w2)
    for w in range(4):
        k(f'ds_read_b32 v{108+2*w}, v23 offset:{w*1536}')
        k(f'ds_read_b32 v{109+2*w}, v23 offset:{w*1536+64}')
    k('s_waitcnt lgkmcnt(0)')
    for w in range(1, 4):
        k(f'v_add_f32 v108, v108, v{108+2*w}')
        k(f'v_add_f32 v109, v109, v{109+2*w}')
    k('v_cvt_pk_bf16_f32 v108, v108, v109')
    k('s_lshl_b32 s55, s53, 16')
    k('buffer_store_dword v108, v24, s[16:19], s55 offen sc1')
    k.put(rd)
    if not EXPER: stamp(3)
    k('s_waitcnt vmcnt(0)')
    k('s_barrier')
    if not EXPER: stamp(4)
    k('s_cmp_eq_u32 s53, 63')
    k('s_cbranch_scc1 %s' % done)
    k('s_lshl_b32 s55, s53, 5')
    k('s_add_u32 s55, s55, s34')
    k('s_lshl_b32 s55, s55, 7')
    nsig = k.label('nsig')
    k('s_cmp_lg_u32 s36, 0')
    k('s_cbranch_scc1 %s' % nsig)
    k('s_mov_b64 s[60:61], exec')
    k('s_mov_b64 exec, 1')
    k('v_mov_b32 v27, s55')
    k('buffer_atomic_add v26, v27, s[24:27], 0 offen')
    k('s_mov_b64 exec, s[60:61]')
    k('v_mov_b32 v27, s55')
    poll = k.label('poll1'); pdone = k.label('p1d')
    k.put(poll)
    k('buffer_load_dword v28, v27, s[24:27], 0 offen sc1')
    k('s_waitcnt vmcnt(0)')
    k('v_cmp_le_u32 vcc, 8, v28')
    k('s_cbranch_vccnz %s' % pdone)
    k('s_branch %s' % poll)
    k.put(pdone)
    k.put(nsig)
    k('s_barrier')
    if not EXPER: stamp(5)
    k('s_lshl_b32 s55, s53, 17')
    for u in range(4):
        k(f'buffer_load_dwordx4 v[{96+4*u}:{99+4*u}], v7, s[12:15], s55 offen offset:{64*u}')
    k('s_add_u32 s56, s55, 8192')
    for u in range(4):
        k(f'buffer_load_dwordx4 v[{112+4*u}:{115+4*u}], v7, s[12:15], s56 offen offset:{64*u}')
    k('s_lshl_b32 s55, s53, 16')
    for a_ in range(8):
        k(f'buffer_load_dwordx2 v[{128+2*a_}:{129+2*a_}], v12, s[16:19], s55 offen offset:{256*a_}')
    for i in range(12): k(f'v_mov_b32 v{144+i}, 0')
    k('s_waitcnt vmcnt(12)')
    for u in range(4):
        for tile in range(2):
            r = KX + (tile*4+u)*4
            k(f'v_mfma_f32_16x16x32_bf16 v[{144+4*tile}:{147+4*tile}], v[{r}:{r+3}], v[{96+4*u}:{99+4*u}], v[{144+4*tile}:{147+4*tile}]')
    k('s_waitcnt vmcnt(8)')
    for u in range(4):
        k(f'v_mfma_f32_16x16x32_bf16 v[152:155], v[{112+4*u}:{115+4*u}], v[{96+4*u}:{99+4*u}], v[152:155]')
    k('s_nop 7')
    k('s_nop 1')
    k(f's_mov_b32 s55, {SCALE}')
    for i in range(0, 12, 2):
        a, b = 144+i, 145+i
        k(f'v_cvt_pk_bf16_f32 v27, v{a}, v{b}')
        k(f'v_lshlrev_b32 v{a}, 16, v27')
        k(f'v_and_b32 v{b}, 0xffff0000, v27')
        k(f'v_mul_f32 v{a}, s55, v{a}')
        k(f'v_mul_f32 v{b}, s55, v{b}')
        k(f'v_cvt_pk_bf16_f32 v27, v{a}, v{b}')
        k(f'v_lshlrev_b32 v{a}, 16, v27')
        k(f'v_and_b32 v{b}, 0xffff0000, v27')
    k('v_cmp_gt_u32 vcc, 2, v3')
    k('v_mov_b32 v28, 0xf149f2ca')
    k('s_nop 1')
    for i in range(8, 12):
        k(f'v_cndmask_b32 v{144+i}, v28, v{144+i}, vcc')
    k('v_max_f32 v27, v144, v145')
    for i in range(2, 12): k(f'v_max_f32 v27, v27, v{144+i}')
    for ad in (17, 18):
        k(f'ds_bpermute_b32 v28, v{ad}, v27')
        k('s_waitcnt lgkmcnt(0)')
        k('v_max_f32 v27, v27, v28')
    k(f's_mov_b32 s55, {LOG2E}')
    for i in range(12):
        k(f'v_sub_f32 v{144+i}, v{144+i}, v27')
        k(f'v_mul_f32 v{144+i}, s55, v{144+i}')
        k(f'v_exp_f32 v{144+i}, v{144+i}')
    k('s_nop 0')
    k('v_add_f32 v27, v144, v145')
    for i in range(2, 12): k(f'v_add_f32 v27, v27, v{144+i}')
    for ad in (17, 18):
        k(f'ds_bpermute_b32 v28, v{ad}, v27')
        k('s_waitcnt lgkmcnt(0)')
        k('v_add_f32 v27, v27, v28')
    k('v_rcp_f32 v27, v27')
    k('s_nop 0')
    for i in range(12): k(f'v_mul_f32 v{144+i}, v{144+i}, v27')
    k('v_cvt_pk_bf16_f32 v156, v144, v145')
    k('v_cvt_pk_bf16_f32 v157, v146, v147')
    k('v_cvt_pk_bf16_f32 v158, v148, v149')
    k('v_cvt_pk_bf16_f32 v159, v150, v151')
    k('v_cvt_pk_bf16_f32 v160, v152, v153')
    k('v_cvt_pk_bf16_f32 v161, v154, v155')
    k('v_mov_b32 v162, 0')
    k('v_mov_b32 v163, 0')
    k('s_waitcnt vmcnt(0)')
    k('v_cmp_gt_u32 vcc, 2, v3')
    k('s_nop 1')
    for a in range(8):
        k(f'v_cndmask_b32 v{164+4*a}, 0, v{128+2*a}, vcc')
        k(f'v_cndmask_b32 v{165+4*a}, 0, v{129+2*a}, vcc')
        k(f'v_mov_b32 v{166+4*a}, 0')
        k(f'v_mov_b32 v{167+4*a}, 0')
    for i in range(32): k(f'v_mov_b32 v{96+i}, 0')
    k('s_nop 1')
    for a in range(8):
        k(f'v_mfma_f32_16x16x32_bf16 v[{96+4*a}:{99+4*a}], v[{VX+4*a}:{VX+4*a+3}], v[156:159], v[{96+4*a}:{99+4*a}]')
    for a in range(8):
        k(f'v_mfma_f32_16x16x32_bf16 v[{96+4*a}:{99+4*a}], v[{164+4*a}:{167+4*a}], v[160:163], v[{96+4*a}:{99+4*a}]')
    k('s_nop 7')
    k('s_nop 1')
    for u in range(4):
        for h2 in range(2):
            a = 2*u + h2
            k(f'v_cvt_pk_bf16_f32 v{128+4*u+2*h2}, v{96+4*a}, v{97+4*a}')
            k(f'v_cvt_pk_bf16_f32 v{129+4*u+2*h2}, v{98+4*a}, v{99+4*a}')
    for i in range(8): k(f'v_mov_b32 v{144+i}, 0')
    k('s_nop 1')
    for u in range(4):
        for tile in range(2):
            aw = 96 + (tile*4+u)*4
            k(f'v_mfma_f32_16x16x32_bf16 v[{144+4*tile}:{147+4*tile}], v[{128+4*u}:{131+4*u}], a[{aw}:{aw+3}], v[{144+4*tile}:{147+4*tile}]')
    k('s_nop 7')
    k('s_nop 1')
    stamp(6)
    k('s_lshl_b32 s55, s53, 15')
    k('s_mov_b64 s[60:61], exec')
    k('s_mov_b64 exec, 0xffffffff')
    for tile in range(2):
        for r in range(4):
            k(f's_add_u32 s56, s55, {r*4096}')
            k(f'buffer_atomic_add_f32 v{144+4*tile+r}, v15, s[20:23], s56 offen offset:{64*tile}')
    k('s_mov_b64 exec, s[60:61]')
    k('s_waitcnt vmcnt(0)')
    k('s_barrier')
    nsig = k.label('nsig2')
    k('s_cmp_lg_u32 s36, 0')
    k(f's_cbranch_scc1 {nsig}')
    k('s_lshl_b32 s55, s53, 11')
    k('s_and_b32 s56, s2, 15')
    k('s_lshl_b32 s56, s56, 7')
    k('s_add_u32 s55, s55, s56')
    k(f's_add_u32 s55, s55, {256*1024}')
    k('s_mov_b64 s[60:61], exec')
    k('s_mov_b64 exec, 1')
    k('v_mov_b32 v27, s55')
    k('buffer_atomic_add v26, v27, s[24:27], 0 offen')
    k('s_mov_b64 exec, s[60:61]')
    k.put(nsig)
    stamp(7)
    if prof:
        np_ = k.label('np')
        k('s_cmp_lg_u32 s53, 20')
        k(f's_cbranch_scc1 {np_}')
        k('s_cmp_lg_u32 s36, 0')
        k(f's_cbranch_scc1 {np_}')
        k('s_and_b32 s84, s2, 127')
        k('s_cmp_lg_u32 s84, 0')
        k(f's_cbranch_scc1 {np_}')
        k(f's_load_dwordx2 s[84:85], s[0:1], {ARG["dbg"]}')
        k('s_waitcnt lgkmcnt(0)')
        srd(k, 88, 84, 85, 256)
        k('s_lshr_b32 s84, s2, 7')
        k('s_lshl_b32 s84, s84, 5')
        for i in range(8):
            k(f'v_mov_b32 v27, s{64+i}')
            k(f'v_mov_b32 v28, {4*i}')
            k('s_mov_b64 s[60:61], exec')
            k('s_mov_b64 exec, 1')
            k('buffer_store_dword v27, v28, s[88:91], s84 offen')
            k('s_mov_b64 exec, s[60:61]')
        k.put(np_)
    k('s_add_u32 s53, s53, 1')
    k(f's_branch {loop}')
    k.put(done)
    return k

def gen_att(name, qkv_off, mqkv_off, ox_off):
    k = Kern(name, nvgpr=160, nsgpr=96)
    k.grid, k.block, k.lds = 512, 256, 4*8192
    done = k.label('done')
    k('s_cmp_ge_u32 s2, 512')
    k(f's_cbranch_scc1 {done}')
    k(f's_load_dwordx2 s[4:5], s[0:1], {ARG["ws"]}')
    k('v_and_b32 v1, 63, v0')
    k('v_lshrrev_b32 v2, 6, v0')
    k('s_nop 0')
    k('v_readfirstlane_b32 s36, v2')
    k('s_lshr_b32 s33, s2, 3')
    k('s_and_b32 s34, s2, 7')
    k('s_lshl_b32 s34, s34, 2')
    k('s_add_u32 s34, s34, s36')
    k('v_and_b32 v2, 31, v1')
    k('v_lshrrev_b32 v3, 5, v1')
    k('s_waitcnt lgkmcnt(0)')
    srd_off(k, 8, 4, 5, qkv_off, 2048*24576)
    srd_off(k, 12, 4, 5, mqkv_off, 8*1024*1024)
    srd_off(k, 16, 4, 5, mqkv_off + 8*1024*1024, 4*1024*1024)
    srd_off(k, 20, 4, 5, ox_off, 2048*8192)
    k('s_mul_i32 s40, s33, %d' % (32*24576))
    k('s_lshl_b32 s41, s34, 8')
    k('s_add_u32 s40, s40, s41')
    k('s_mov_b32 s42, 24576')
    k('v_mul_lo_u32 v4, s42, v2')
    k('v_lshl_add_u32 v4, v3, 4, v4')
    k('s_add_u32 s43, s40, 8192')
    for t in range(8):
        k(f'buffer_load_dwordx4 v[{16+4*t}:{19+4*t}], v4, s[8:11], s40 offen offset:{32*t}')
    for t in range(8):
        k(f'buffer_load_dwordx4 v[{48+4*t}:{51+4*t}], v4, s[8:11], s43 offen offset:{32*t}')
    k('v_and_b32 v5, 7, v2')
    k('v_lshlrev_b32 v5, 14, v5')
    k('v_lshl_add_u32 v5, v3, 4, v5')
    k('s_lshl_b32 s44, s33, 17')
    k('s_add_u32 s44, s44, s41')
    k('s_add_u32 s44, s44, 8192')
    for t in range(8):
        k(f'buffer_load_dwordx4 v[{80+4*t}:{83+4*t}], v5, s[12:15], s44 offen offset:{32*t}')
    k('v_lshrrev_b32 v6, 4, v1')
    k('v_mul_lo_u32 v6, s42, v6')
    k('v_and_b32 v7, 15, v1')
    k('v_lshl_add_u32 v6, v7, 4, v6')
    k('s_add_u32 s45, s40, 16384')
    k('s_lshl_b32 s46, s36, 13')
    for i in range(8):
        k(f's_add_u32 s47, s45, {i*4*24576}')
        k(f's_add_u32 m0, s46, {i*1024}')
        k('buffer_load_dwordx4 v6, s[8:11], s47 offen lds')
    k('v_lshlrev_b32 v8, 4, v2')
    k('v_lshl_add_u32 v8, v3, 3, v8')
    k('s_lshl_b32 s47, s33, 16')
    k('s_lshl_b32 s48, s34, 11')
    k('s_add_u32 s47, s47, s48')
    for a in range(4):
        k(f'buffer_load_dwordx2 v[{112+2*a}:{113+2*a}], v8, s[16:19], s47 offen offset:{512*a}')
    for i in range(32): k(f'v_mov_b32 v{120+i}, 0')
    k('s_waitcnt vmcnt(12)')
    for t in range(8):
        k(f'v_mfma_f32_32x32x16_bf16 v[120:135], v[{48+4*t}:{51+4*t}], v[{16+4*t}:{19+4*t}], v[120:135]')
        k(f'v_mfma_f32_32x32x16_bf16 v[136:151], v[{80+4*t}:{83+4*t}], v[{16+4*t}:{19+4*t}], v[136:151]')
    k('s_nop 15')
    k('s_nop 3')
    k(f's_mov_b32 s55, {SCALE}')
    regs = list(range(120, 140))
    for i in range(0, 20, 2):
        a, b = regs[i], regs[i+1]
        k(f'v_cvt_pk_bf16_f32 v9, v{a}, v{b}')
        k(f'v_lshlrev_b32 v{a}, 16, v9')
        k(f'v_and_b32 v{b}, 0xffff0000, v9')
        k(f'v_mul_f32 v{a}, s55, v{a}')
        k(f'v_mul_f32 v{b}, s55, v{b}')
        k(f'v_cvt_pk_bf16_f32 v9, v{a}, v{b}')
        k(f'v_lshlrev_b32 v{a}, 16, v9')
        k(f'v_and_b32 v{b}, 0xffff0000, v9')
    k('v_mov_b32 v10, 0xf149f2ca')
    k('v_lshlrev_b32 v11, 2, v3')
    k('v_sub_u32 v11, v2, v11')
    for r in range(16):
        kk = 8*(r >> 2) + (r & 3)
        k(f'v_cmp_le_i32 vcc, {kk}, v11')
        k('s_nop 1')
        k(f'v_cndmask_b32 v{120+r}, v10, v{120+r}, vcc')
    k('v_max_f32 v9, v120, v121')
    for i in range(2, 20): k(f'v_max_f32 v9, v9, v{regs[i]}')
    k('v_xor_b32 v12, 32, v1')
    k('v_lshlrev_b32 v12, 2, v12')
    k('ds_bpermute_b32 v10, v12, v9')
    k('s_waitcnt lgkmcnt(0)')
    k('v_max_f32 v9, v9, v10')
    k(f's_mov_b32 s55, {LOG2E}')
    for r in regs:
        k(f'v_sub_f32 v{r}, v{r}, v9')
        k(f'v_mul_f32 v{r}, s55, v{r}')
        k(f'v_exp_f32 v{r}, v{r}')
    k('s_nop 0')
    k('v_add_f32 v9, v120, v121')
    for i in range(2, 20): k(f'v_add_f32 v9, v9, v{regs[i]}')
    k('ds_bpermute_b32 v10, v12, v9')
    k('s_waitcnt lgkmcnt(0)')
    k('v_add_f32 v9, v9, v10')
    k('v_rcp_f32 v9, v9')
    k('s_nop 0')
    for r in regs: k(f'v_mul_f32 v{r}, v{r}, v9')
    for t in range(2):
        for e in range(4):
            k(f'v_cvt_pk_bf16_f32 v{16+4*t+e}, v{120+8*t+2*e}, v{121+8*t+2*e}')
    k('v_cvt_pk_bf16_f32 v24, v136, v137')
    k('v_cvt_pk_bf16_f32 v25, v138, v139')
    k('v_mov_b32 v26, 0')
    k('v_mov_b32 v27, 0')
    k('v_and_b32 v9, 15, v1')
    k('v_lshrrev_b32 v10, 2, v9')
    k('v_lshl_add_u32 v10, v3, 2, v10')
    k('v_lshlrev_b32 v10, 8, v10')
    k('v_and_b32 v9, 3, v9')
    k('v_lshl_add_u32 v10, v9, 3, v10')
    k('v_bfe_u32 v9, v1, 4, 1')
    k('v_lshl_add_u32 v10, v9, 5, v10')
    k('v_add_u32 v10, s46, v10')
    k('s_waitcnt vmcnt(0)')
    for a in range(4):
        for t in range(2):
            r = 48 + (a*2+t)*4
            k(f'ds_read_b64_tr_b16 v[{r}:{r+1}], v10 offset:{t*4096 + a*64}')
            k(f'ds_read_b64_tr_b16 v[{r+2}:{r+3}], v10 offset:{t*4096 + 2048 + a*64}')
    for a in range(4):
        k(f'v_mov_b32 v{80+4*a}, v{112+2*a}')
        k(f'v_mov_b32 v{81+4*a}, v{113+2*a}')
        k(f'v_mov_b32 v{82+4*a}, 0')
        k(f'v_mov_b32 v{83+4*a}, 0')
    for i in range(64): k(f'v_mov_b32 v{96+i}, 0')
    k('s_waitcnt lgkmcnt(0)')
    for a in range(4):
        o = 96 + 16*a
        for t in range(2):
            r = 48 + (a*2+t)*4
            k(f'v_mfma_f32_32x32x16_bf16 v[{o}:{o+15}], v[{r}:{r+3}], v[{16+4*t}:{19+4*t}], v[{o}:{o+15}]')
        k(f'v_mfma_f32_32x32x16_bf16 v[{o}:{o+15}], v[{80+4*a}:{83+4*a}], v[24:27], v[{o}:{o+15}]')
    k('s_nop 15')
    k('s_nop 3')
    k('v_lshlrev_b32 v4, 13, v2')
    k('v_lshl_add_u32 v4, v3, 3, v4')
    k('s_lshl_b32 s40, s33, 18')
    k('s_add_u32 s40, s40, s41')
    for a in range(4):
        for q in range(4):
            o = 96 + 16*a + 4*q
            k(f'v_cvt_pk_bf16_f32 v8, v{o}, v{o+1}')
            k(f'v_cvt_pk_bf16_f32 v9, v{o+2}, v{o+3}')
            k(f'buffer_store_dwordx2 v[8:9], v4, s[20:23], s40 offen offset:{(32*a+8*q)*2}')
            k('s_nop 1')
    k.put(done)
    return k
```

```python
from asmlib import *
import os
SCALE = '0x3db504f3'
LOG2E = '0x3fb8aa3b'

def gen_rec4(name, qkv_off, mqkv_off, acc_off, flag_off, prof=False):
    k = Kern(name, nvgpr=200, nagpr=128, nsgpr=102)
    k.grid, k.block, k.lds = 256, 256, 131072
    done = k.label('done')
    def stamp(i):
        if prof:
            k('s_memtime s[82:83]')
            k('s_waitcnt lgkmcnt(0)')
            k(f's_mov_b32 s{64+i}, s82')
    VXL, KXL, ACCL, RED, QKL, OUTL = 0, 16384, 32768, 69632, 77824, 86016
    k('s_cmp_ge_u32 s2, 256')
    k(f's_cbranch_scc1 {done}')
    k(f's_load_dwordx2 s[4:5], s[0:1], {ARG["ws"]}')
    k(f's_load_dwordx2 s[6:7], s[0:1], {ARG["mem0"]}')
    k(f's_load_dwordx2 s[40:41], s[0:1], {ARG["Wq"]}')
    k(f's_load_dwordx2 s[42:43], s[0:1], {ARG["Wk"]}')
    k(f's_load_dwordx2 s[44:45], s[0:1], {ARG["Wv"]}')
    k(f's_load_dwordx2 s[46:47], s[0:1], {ARG["Wo"]}')
    k('v_and_b32 v1, 63, v0')
    k('v_lshrrev_b32 v2, 6, v0')
    k('s_nop 0')
    k('v_readfirstlane_b32 s36, v2')
    k('v_and_b32 v2, 15, v1')
    k('v_lshrrev_b32 v3, 4, v1')
    k('s_waitcnt lgkmcnt(0)')
    srd_off(k, 24, 4, 5, flag_off, 512*1024)
    k('s_getreg_b32 s90, hwreg(HW_REG_XCC_ID)')
    k('s_and_b32 s90, s90, 7')
    k('v_mov_b32 v26, 1')
    tk = k.label('tk')
    k('s_cmp_lg_u32 s36, 0')
    k(f's_cbranch_scc1 {tk}')
    k('s_mov_b64 s[60:61], exec')
    k('s_mov_b64 exec, 1')
    k('s_lshl_b32 s91, s90, 7')
    k(f's_add_u32 s91, s91, {448*1024}')
    k('v_mov_b32 v27, s91')
    k('v_mov_b32 v19, 1')
    k('buffer_atomic_add v19, v27, s[24:27], 0 offen sc0 sc1')
    k('s_waitcnt vmcnt(0)')
    k(f'v_mov_b32 v27, {448*1024 + 2048}')
    k('buffer_atomic_add v26, v27, s[24:27], 0 offen sc1')
    ip = k.label('ip')
    k.put(ip)
    k('buffer_load_dword v20, v27, s[24:27], 0 offen sc1')
    k('s_waitcnt vmcnt(0)')
    k('v_cmp_gt_u32 vcc, 256, v20')
    k(f's_cbranch_vccnz {ip}')
    k('s_mov_b64 exec, 0xff')
    k('v_lshlrev_b32 v27, 7, v1')
    k(f'v_add_u32 v27, {448*1024}, v27')
    k('buffer_load_dword v20, v27, s[24:27], 0 offen sc1')
    k('s_waitcnt vmcnt(0)')
    k('v_cmp_ne_u32 vcc, 32, v20')
    k('s_mov_b64 exec, 1')
    k('v_mov_b32 v20, 0')
    k('ds_write_b32 v20, v19')
    k('v_mov_b32 v21, vcc_lo')
    k('ds_write_b32 v20, v21 offset:4')
    k('s_mov_b64 exec, s[60:61]')
    k('s_waitcnt lgkmcnt(0)')
    k.put(tk)
    k('s_barrier')
    k('v_mov_b32 v20, 0')
    k('ds_read_b64 v[20:21], v20')
    k('s_waitcnt lgkmcnt(0)')
    k('v_readfirstlane_b32 s91, v20')
    k('v_readfirstlane_b32 s92, v21')
    k('s_barrier')
    k('s_lshl_b32 s90, s90, 5')
    k('s_add_u32 s90, s90, s91')
    k('s_cmp_eq_u32 s92, 0')
    k('s_cselect_b32 s93, 1, 0')
    if os.environ.get('NOFAST'): k('s_mov_b32 s93, 0')
    k('s_cmp_eq_u32 s93, 1')
    k('s_cselect_b32 s90, s90, s2')
    k('s_lshr_b32 s34, s90, 3')
    k('s_and_b32 s35, s90, 7')
    k('s_lshl_b32 s37, s34, 8')
    k('s_lshl_b32 s38, s35, 5')
    k('s_add_u32 s37, s37, s38')
    for c in range(3):
        k(f's_add_u32 s{8+4*c}, s{40+2*c}, s37')
        k(f's_addc_u32 s{9+4*c}, s{41+2*c}, 0')
        k(f's_and_b32 s{9+4*c}, s{9+4*c}, 0xffff')
        k(f's_sub_u32 s{10+4*c}, {1024*8192}, s37')
        k(f's_mov_b32 s{11+4*c}, 0x00020000')
    k('s_lshl_b32 s38, s34, 18')
    k('s_lshl_b32 s39, s35, 8')
    k('s_add_u32 s38, s38, s39')
    k('s_add_u32 s20, s46, s38')
    k('s_addc_u32 s21, s47, 0')
    k('s_and_b32 s21, s21, 0xffff')
    k(f's_sub_u32 s22, {4096*2048}, s38')
    k('s_mov_b32 s23, 0x00020000')
    k('v_lshrrev_b32 v4, 1, v1')
    k('v_lshlrev_b32 v4, 13, v4')
    k('v_and_b32 v5, 1, v1')
    k('v_lshl_add_u32 v4, v5, 4, v4')
    for c in range(3):
        for i in range(8):
            k(f's_lshl_b32 s38, s36, 3')
            k(f's_add_u32 s38, s38, {i}')
            k('s_lshl_b32 s39, s38, 18')
            k('s_lshl_b32 s38, s38, 10')
            k(f's_add_u32 m0, s38, {c*32768}')
            k(f'buffer_load_dwordx4 v4, s[{8+4*c}:{11+4*c}], s39 offen lds')
    k('v_lshrrev_b32 v4, 4, v1')
    k('v_lshlrev_b32 v4, 11, v4')
    k('v_lshl_add_u32 v4, v2, 4, v4')
    for i in range(8):
        k(f's_lshl_b32 s38, s36, 3')
        k(f's_add_u32 s38, s38, {i}')
        k('s_lshl_b32 s39, s38, 13')
        k('s_lshl_b32 s38, s38, 10')
        k(f's_add_u32 m0, s38, {98304}')
        k(f'buffer_load_dwordx4 v4, s[20:23], s39 offen lds')
    k('s_waitcnt vmcnt(0)')
    k('s_barrier')
    k('v_lshrrev_b32 v4, 2, v2')
    k('v_and_b32 v5, 3, v2')
    k('v_lshl_add_u32 v4, v3, 2, v4')
    k('v_lshlrev_b32 v4, 5, v4')
    k('v_lshl_add_u32 v4, v5, 3, v4')
    k('s_lshl_b32 s38, s36, 13')
    k('v_add_u32 v4, s38, v4')
    for c in range(3):
        if c == 2: k('v_add_u32 v4, 65536, v4')
        for t in range(8):
            k(f'ds_read_b64_tr_b16 v[8:9], v4 offset:{(c&1)*32768 + t*1024}')
            k(f'ds_read_b64_tr_b16 v[10:11], v4 offset:{(c&1)*32768 + t*1024 + 512}')
            k('s_waitcnt lgkmcnt(0)')
            for e in range(4):
                k(f'v_accvgpr_write_b32 a{(c*8+t)*4+e}, v{8+e}')
    k('v_lshrrev_b32 v4, 2, v2')
    k('v_lshl_add_u32 v4, v3, 2, v4')
    k('v_lshlrev_b32 v4, 8, v4')
    k('v_lshl_add_u32 v4, v5, 3, v4')
    k('s_lshl_b32 s38, s36, 6')
    k('s_add_u32 s38, s38, 98304')
    k('v_add_u32 v4, s38, v4')
    for tile in range(2):
        for u in range(4):
            k(f'ds_read_b64_tr_b16 v[8:9], v4 offset:{u*8192 + tile*32}')
            k(f'ds_read_b64_tr_b16 v[10:11], v4 offset:{u*8192 + tile*32 + 4096}')
            k('s_waitcnt lgkmcnt(0)')
            for e in range(4):
                k(f'v_accvgpr_write_b32 a{96+(tile*4+u)*4+e}, v{8+e}')
    k('s_barrier')
    srd_off(k, 8, 4, 5, qkv_off, 2048*24576)
    srd_off(k, 12, 4, 5, mqkv_off, 8*1024*1024)
    srd_off(k, 16, 4, 5, mqkv_off + 8*1024*1024, 4*1024*1024)
    srd_off(k, 20, 4, 5, acc_off, 2*1024*1024)
    srd(k, 28, 6, 7, 16384)
    k('v_and_b32 v5, 7, v2')
    k('v_lshlrev_b32 v5, 11, v5')
    k('v_lshl_add_u32 v5, v3, 3, v5')
    k('s_lshl_b32 s38, s36, 9')
    k('v_add_u32 v5, s38, v5')
    k('s_mov_b32 s38, 24576')
    k('v_mul_lo_u32 v6, s38, v3')
    k('v_lshlrev_b32 v7, 1, v3')
    k('v_xor_b32 v7, v7, v2')
    k('v_lshl_add_u32 v6, v7, 4, v6')
    k('s_lshl_b32 s39, s34, 8')
    k('v_add_u32 v6, s39, v6')
    k('v_add_u32 v6, 16384, v6')
    for v in range(4):
        k('v_mul_lo_u32 v%d, s38, v3' % (192+v))
        k(f'v_add_u32 v7, {4*v}, v3')
        k('v_xor_b32 v7, v7, v2')
        k('v_lshl_add_u32 v%d, v7, 4, v%d' % (192+v, 192+v))
        k('v_add_u32 v%d, s39, v%d' % (192+v, 192+v))
        k('v_add_u32 v%d, 8192, v%d' % (192+v, 192+v))
    for u in range(4):
        k(f'v_add_u32 v7, {4*u}, v3')
        k('v_xor_b32 v7, v7, v2')
        k('v_lshlrev_b32 v7, 4, v7')
        k(f'v_lshl_add_u32 v{196+u}, v2, 8, v7')
        k(f'v_add_u32 v{196+u}, {KXL}, v{196+u}')
    k('v_lshrrev_b32 v7, 2, v2')
    k('v_and_b32 v8, 3, v2')
    k('s_movk_i32 s38, 1152')
    k('v_mul_lo_u32 v14, s38, v3')
    k('v_lshl_add_u32 v14, v7, 8, v14')
    k('v_lshl_add_u32 v14, v8, 3, v14')
    k('v_lshlrev_b32 v13, 5, v7')
    k('v_lshlrev_b32 v9, 14, v3')
    k('v_lshlrev_b32 v7, 1, v3')
    k('v_xor_b32 v8, v7, v2')
    k('v_lshl_add_u32 v12, v8, 4, v9')
    k('v_add_u32 v12, s39, v12')
    k('v_add_u32 v7, 8, v7')
    k('v_xor_b32 v8, v7, v2')
    k('v_lshl_add_u32 v11, v8, 4, v9')
    k('v_add_u32 v11, s39, v11')
    k('v_add_u32 v11, 65536, v11')
    k('v_lshlrev_b32 v10, 4, v1')
    k('v_and_b32 v7, 7, v2')
    k('v_lshlrev_b32 v8, 1, v7')
    for u in range(4):
        k(f'v_add_u32 v9, {4*u}, v3')
        k('v_xor_b32 v9, v9, v8')
        k('v_lshlrev_b32 v9, 4, v9')
        k(f'v_lshl_add_u32 v{28+u}, v7, 8, v9')
        k(f'v_add_u32 v{28+u}, {QKL}, v{28+u}')
    k('v_and_b32 v7, 1, v3')
    k('v_lshlrev_b32 v9, 4, v2')
    k('v_lshl_add_u32 v9, v7, 3, v9')
    k(f'v_add_u32 v9, {QKL+4096}, v9')
    k('v_and_b32 v7, 7, v2')
    k('s_movk_i32 s38, 1088')
    k('v_mul_lo_u32 v4, s38, v7')
    k('v_lshl_add_u32 v4, v3, 4, v4')
    k('s_mul_i32 s38, s36, 8704')
    k(f's_add_u32 s38, s38, {ACCL}')
    k('v_add_u32 v4, s38, v4')
    k('s_movk_i32 s38, 2112')
    k('v_mul_lo_u32 v15, s38, v3')
    k('v_lshl_add_u32 v15, v2, 2, v15')
    k('s_lshl_b32 s38, s36, 7')
    k(f's_add_u32 s38, s38, {OUTL}')
    k('v_add_u32 v15, s38, v15')
    k('s_mul_i32 s38, s36, 1056')
    k(f's_add_u32 s38, s38, {OUTL}')
    k('v_lshl_add_u32 v7, v1, 2, s38')
    k('s_lshl_b32 s38, s36, 13')
    k('s_lshl_b32 s52, s35, 9')
    k('s_add_u32 s38, s38, s52')
    k('v_lshl_add_u32 v8, v1, 2, s38')
    k('v_lshlrev_b32 v16, 8, v3')
    k('v_lshl_add_u32 v16, v2, 2, v16')
    k('s_mul_i32 s38, s36, 1536')
    k('v_add_u32 v16, s38, v16')
    k(f'v_add_u32 v16, {RED}, v16')
    k('v_xor_b32 v17, 16, v1')
    k('v_lshlrev_b32 v17, 2, v17')
    k('v_xor_b32 v18, 32, v1')
    k('v_lshlrev_b32 v18, 2, v18')
    k('v_lshrrev_b32 v19, 3, v1')
    k('v_and_b32 v20, 7, v1')
    k('v_lshlrev_b32 v21, 6, v19')
    k('v_lshl_add_u32 v21, v20, 3, v21')
    k('s_lshl_b32 s38, s36, 9')
    k('v_add_u32 v21, s38, v21')
    k(f'v_add_u32 v21, {RED}, v21')
    k('v_lshlrev_b32 v22, 14, v19')
    k('v_lshl_add_u32 v22, v20, 2, v22')
    k('s_lshl_b32 s38, s36, 13')
    k('s_add_u32 s38, s38, s37')
    k('v_add_u32 v22, s38, v22')
    k('v_lshrrev_b32 v19, 2, v1')
    k('v_and_b32 v20, 3, v1')
    k('v_lshlrev_b32 v23, 7, v20')
    k('v_lshl_add_u32 v23, v19, 2, v23')
    k('v_add_u32 v23, %d, v23' % (RED + 1024))
    k('v_lshlrev_b32 v24, 4, v19')
    k('v_lshl_add_u32 v24, v20, 2, v24')
    k('s_lshl_b32 s38, s37, 3')
    k('v_add_u32 v24, s38, v24')
    k('v_lshlrev_b32 v25, 7, v1')
    k('v_add_u32 v25, %d, v25' % (256*1024))
    k('v_mov_b32 v26, 1')
    k('s_mov_b32 s53, 0')
    KX, VX, MEM, MP = 32, 64, 96, 160
    def prefetch():
        k('s_mul_i32 s54, s53, %d' % (32*24576))
        for ii in range(2):
            k(f's_lshl_b32 s55, s36, 1')
            k(f's_add_u32 s55, s55, {ii}')
            k('s_mul_i32 s56, s55, %d' % (4*24576))
            k('s_add_u32 s56, s56, s54')
            k('s_mul_i32 s57, s55, 1152')
            k(f's_add_u32 m0, s57, {VXL}')
            k('buffer_load_dwordx4 v6, s[8:11], s56 offen lds')
            k('s_lshl_b32 s57, s55, 10')
            k(f's_add_u32 m0, s57, {KXL}')
            lo = k.label('kv'); le = k.label('ke')
            k('s_bitcmp1_b32 s36, 0')
            k(f's_cbranch_scc1 {lo}')
            k(f'buffer_load_dwordx4 v{192+ii}, s[8:11], s56 offen lds')
            k(f's_branch {le}')
            k.put(lo)
            k(f'buffer_load_dwordx4 v{194+ii}, s[8:11], s56 offen lds')
            k.put(le)
    loop = k.label('loop')
    k.put(loop)
    stamp(0)
    prefetch()
    k('s_waitcnt vmcnt(0)')
    k('s_barrier')
    for tile in range(2):
        for u in range(4):
            r = KX + (tile*4+u)*4
            k(f'ds_read_b128 v[{r}:{r+3}], v{196+u} offset:{tile*4096}')
    for a in range(8):
        k(f'v_xor_b32 v27, {a*32}, v13')
        k('v_add_u32 v27, v27, v14')
        k(f'ds_read_b64_tr_b16 v[{VX+4*a}:{VX+4*a+1}], v27 offset:{VXL}')
        k(f'ds_read_b64_tr_b16 v[{VX+4*a+2}:{VX+4*a+3}], v27 offset:{VXL+4*1152}')
    first = k.label('first'); haveM = k.label('haveM')
    k('s_cmp_eq_u32 s53, 0')
    k(f's_cbranch_scc1 {first}')
    k('s_sub_u32 s55, s53, 1')
    k('s_lshl_b32 s56, s55, 11')
    poll = k.label('poll2'); pdone = k.label('p2d'); pskip = k.label('p2s')
    k('s_cmp_lg_u32 s36, 0')
    k(f's_cbranch_scc1 {pskip}')
    k('s_mov_b64 s[60:61], exec')
    k('s_mov_b64 exec, 0xffff')
    k.put(poll)
    k('buffer_load_dword v27, v25, s[24:27], s56 offen sc1')
    k('s_waitcnt vmcnt(0)')
    k('v_cmp_le_u32 vcc, 16, v27')
    k('s_cmp_eq_u64 vcc, exec')
    k(f's_cbranch_scc1 {pdone}')
    k(f's_branch {poll}')
    k.put(pdone)
    k('s_mov_b64 exec, s[60:61]')
    k.put(pskip)
    k('s_barrier')
    stamp(1)
    k('s_lshl_b32 s56, s55, 15')
    k('s_lshl_b32 s58, s36, 10')
    k('s_add_u32 s56, s56, s58')
    k('s_mul_i32 s58, s36, 8704')
    for r in range(8):
        k(f's_add_u32 s57, s56, {r*4096}')
        k(f's_add_u32 m0, s58, {ACCL + r*1088}')
        k('buffer_load_dwordx4 v10, s[20:23], s57 offen sc1 lds')
    k('s_waitcnt vmcnt(0)')
    for t in range(16):
        k(f'ds_read_b128 v[{MEM+4*t}:{MEM+4*t+3}], v4 offset:{64*t}')
    for t in range(8):
        k(f's_waitcnt lgkmcnt({14-2*t})')
        for e in range(4):
            k(f'v_cvt_pk_bf16_f32 v{MP+4*t+e}, v{MEM+8*t+2*e}, v{MEM+8*t+2*e+1}')
    k(f's_branch {haveM}')
    k.put(first)
    for t in range(8):
        k(f'buffer_load_dwordx2 v[{MP+4*t}:{MP+4*t+1}], v5, s[28:31], 0 offen offset:{64*t}')
        k(f'buffer_load_dwordx2 v[{MP+4*t+2}:{MP+4*t+3}], v5, s[28:31], 0 offen offset:{64*t+32}')
    k('s_waitcnt vmcnt(0)')
    k.put(haveM)
    stamp(2)
    for c in range(3):
        for e in range(4): k(f'v_mov_b32 v{96+4*c+e}, 0')
    k('s_nop 1')
    for t in range(8):
        for c in range(3):
            k(f'v_mfma_f32_16x16x32_bf16 v[{96+4*c}:{99+4*c}], v[{MP+4*t}:{MP+4*t+3}], a[{(c*8+t)*4}:{(c*8+t)*4+3}], v[{96+4*c}:{99+4*c}]')
    k('s_nop 7')
    k('s_nop 1')
    k('s_mov_b64 s[60:61], exec')
    k('s_mov_b64 exec, 0xffffffff')
    for c in range(3):
        for r in range(4):
            k(f'ds_write_b32 v16, v{96+4*c+r} offset:{c*512 + r*64}')
    k('s_mov_b64 exec, s[60:61]')
    k('s_waitcnt lgkmcnt(0)')
    k('s_barrier')
    w2 = k.label('w2'); rd = k.label('rd')
    k('s_cmp_eq_u32 s36, 3')
    k(f's_cbranch_scc1 {rd}')
    k('s_cmp_eq_u32 s36, 2')
    k(f's_cbranch_scc1 {w2}')
    for w in range(4):
        k(f'ds_read_b64 v[{108+2*w}:{109+2*w}], v21 offset:{w*1536}')
    k('s_waitcnt lgkmcnt(0)')
    for w in range(1, 4):
        k(f'v_add_f32 v108, v108, v{108+2*w}')
        k(f'v_add_f32 v109, v109, v{109+2*w}')
    k('v_cvt_pk_bf16_f32 v108, v108, v109')
    k('s_lshl_b32 s55, s53, 17')
    _a = k.label('sl'); _b = k.label('se')
    k('s_cmp_eq_u32 s93, 1')
    k(f's_cbranch_scc1 {_a}')
    k('buffer_store_dword v108, v22, s[12:15], s55 offen sc1')
    k(f's_branch {_b}')
    k.put(_a)
    k('buffer_store_dword v108, v22, s[12:15], s55 offen')
    k.put(_b)
    k(f's_branch {rd}')
    k.put(w2)
    for w in range(4):
        k(f'ds_read_b32 v{108+2*w}, v23 offset:{w*1536}')
        k(f'ds_read_b32 v{109+2*w}, v23 offset:{w*1536+64}')
    k('s_waitcnt lgkmcnt(0)')
    for w in range(1, 4):
        k(f'v_add_f32 v108, v108, v{108+2*w}')
        k(f'v_add_f32 v109, v109, v{109+2*w}')
    k('v_cvt_pk_bf16_f32 v108, v108, v109')
    k('s_lshl_b32 s55, s53, 16')
    _a = k.label('sl'); _b = k.label('se')
    k('s_cmp_eq_u32 s93, 1')
    k(f's_cbranch_scc1 {_a}')
    k('buffer_store_dword v108, v24, s[16:19], s55 offen sc1')
    k(f's_branch {_b}')
    k.put(_a)
    k('buffer_store_dword v108, v24, s[16:19], s55 offen')
    k.put(_b)
    k.put(rd)
    stamp(3)
    k('s_waitcnt vmcnt(0)')
    k('s_barrier')
    stamp(4)
    k('s_cmp_eq_u32 s53, 63')
    k(f's_cbranch_scc1 {done}')
    k('s_lshl_b32 s55, s53, 5')
    k('s_add_u32 s55, s55, s34')
    k('s_lshl_b32 s55, s55, 7')
    nsig = k.label('nsig')
    k('s_cmp_lg_u32 s36, 0')
    k(f's_cbranch_scc1 {nsig}')
    k('s_mov_b64 s[60:61], exec')
    k('s_mov_b64 exec, 1')
    k('v_mov_b32 v27, s55')
    pdone = k.label('p1d'); fastp = k.label('fp')
    k('s_cmp_eq_u32 s93, 1')
    k(f's_cbranch_scc1 {fastp}')
    k('buffer_atomic_add v26, v27, s[24:27], 0 offen sc1')
    poll = k.label('poll1')
    k.put(poll)
    k('buffer_load_dword v19, v27, s[24:27], 0 offen sc1')
    k('s_waitcnt vmcnt(0)')
    k('v_cmp_le_u32 vcc, 8, v19')
    k(f's_cbranch_vccnz {pdone}')
    k(f's_branch {poll}')
    k.put(fastp)
    k('buffer_atomic_add v26, v27, s[24:27], 0 offen')
    k('s_mov_b32 s94, 0')
    poll = k.label('poll1f')
    k.put(poll)
    k('buffer_load_dword v19, v27, s[24:27], 0 offen sc1')
    k('s_waitcnt vmcnt(0)')
    k('v_cmp_le_u32 vcc, 8, v19')
    k(f's_cbranch_vccnz {pdone}')
    k('s_add_u32 s94, s94, 1')
    k('s_cmp_lt_u32 s94, 200000')
    k(f's_cbranch_scc1 {poll}')
    k.put(pdone)
    k('s_mov_b64 exec, s[60:61]')
    k.put(nsig)
    k('s_barrier')
    stamp(5)
    l3 = k.label('l3'); l2 = k.label('l2')
    k('s_cmp_eq_u32 s36, 3')
    k(f's_cbranch_scc1 {l3}')
    k('s_cmp_eq_u32 s36, 2')
    k(f's_cbranch_scc1 {l2}')
    k('s_lshl_b32 s55, s53, 17')
    k('s_lshl_b32 s56, s36, 13')
    k('s_add_u32 s55, s55, s56')
    k('s_lshl_b32 s56, s36, 11')
    k(f's_add_u32 m0, s56, {QKL}')
    _a = k.label('sl'); _b = k.label('se')
    k('s_cmp_eq_u32 s93, 1')
    k(f's_cbranch_scc1 {_a}')
    k('buffer_load_dwordx4 v12, s[12:15], s55 offen sc1 lds')
    k(f's_branch {_b}')
    k.put(_a)
    k('buffer_load_dwordx4 v12, s[12:15], s55 offen lds')
    k.put(_b)
    k(f's_add_u32 m0, s56, {QKL+1024}')
    _a = k.label('sl'); _b = k.label('se')
    k('s_cmp_eq_u32 s93, 1')
    k(f's_cbranch_scc1 {_a}')
    k('buffer_load_dwordx4 v11, s[12:15], s55 offen sc1 lds')
    k(f's_branch {_b}')
    k.put(_a)
    k('buffer_load_dwordx4 v11, s[12:15], s55 offen lds')
    k.put(_b)
    k(f's_branch {l3}')
    k.put(l2)
    k('s_lshl_b32 s55, s53, 16')
    k('s_lshl_b32 s56, s34, 11')
    k('s_add_u32 s55, s55, s56')
    k(f's_mov_b32 m0, {QKL+4096}')
    k('s_add_u32 s56, s55, 1024')
    _a = k.label('sl'); _b = k.label('se')
    k('s_cmp_eq_u32 s93, 1')
    k(f's_cbranch_scc1 {_a}')
    k('buffer_load_dwordx4 v10, s[16:19], s55 offen sc1 lds')
    k(f's_branch {_b}')
    k.put(_a)
    k('buffer_load_dwordx4 v10, s[16:19], s55 offen lds')
    k.put(_b)
    k(f's_mov_b32 m0, {QKL+4096+1024}')
    _a = k.label('sl'); _b = k.label('se')
    k('s_cmp_eq_u32 s93, 1')
    k(f's_cbranch_scc1 {_a}')
    k('buffer_load_dwordx4 v10, s[16:19], s56 offen sc1 lds')
    k(f's_branch {_b}')
    k.put(_a)
    k('buffer_load_dwordx4 v10, s[16:19], s56 offen lds')
    k.put(_b)
    k.put(l3)
    k('s_waitcnt vmcnt(0)')
    k('s_barrier')
    for u in range(4):
        k(f'ds_read_b128 v[{96+4*u}:{99+4*u}], v{28+u}')
    for u in range(4):
        k(f'ds_read_b128 v[{112+4*u}:{115+4*u}], v{28+u} offset:2048')
    for a in range(8):
        k(f'ds_read_b64 v[{128+2*a}:{129+2*a}], v9 offset:{256*a}')
    for i in range(12): k(f'v_mov_b32 v{144+i}, 0')
    k('s_waitcnt lgkmcnt(12)')
    for u in range(4):
        for tile in range(2):
            r = KX + (tile*4+u)*4
            k(f'v_mfma_f32_16x16x32_bf16 v[{144+4*tile}:{147+4*tile}], v[{r}:{r+3}], v[{96+4*u}:{99+4*u}], v[{144+4*tile}:{147+4*tile}]')
    k('s_waitcnt lgkmcnt(8)')
    for u in range(4):
        k(f'v_mfma_f32_16x16x32_bf16 v[152:155], v[{112+4*u}:{115+4*u}], v[{96+4*u}:{99+4*u}], v[152:155]')
    k('s_nop 7')
    k('s_nop 1')
    k(f's_mov_b32 s55, {SCALE}')
    for i in range(0, 12, 2):
        a, b = 144+i, 145+i
        k(f'v_cvt_pk_bf16_f32 v27, v{a}, v{b}')
        k(f'v_lshlrev_b32 v{a}, 16, v27')
        k(f'v_and_b32 v{b}, 0xffff0000, v27')
        k(f'v_mul_f32 v{a}, s55, v{a}')
        k(f'v_mul_f32 v{b}, s55, v{b}')
        k(f'v_cvt_pk_bf16_f32 v27, v{a}, v{b}')
        k(f'v_lshlrev_b32 v{a}, 16, v27')
        k(f'v_and_b32 v{b}, 0xffff0000, v27')
    k('v_cmp_gt_u32 s[62:63], 2, v3')
    k('v_mov_b32 v19, 0xf149f2ca')
    k('s_nop 1')
    for i in range(8, 12):
        k(f'v_cndmask_b32 v{144+i}, v19, v{144+i}, s[62:63]')
    k('v_max3_f32 v27, v144, v145, v146')
    k('v_max3_f32 v27, v27, v147, v148')
    k('v_max3_f32 v27, v27, v149, v150')
    k('v_max3_f32 v27, v27, v151, v152')
    k('v_max3_f32 v27, v27, v153, v154')
    k('v_max_f32 v27, v27, v155')
    for ad in (17, 18):
        k(f'ds_bpermute_b32 v19, v{ad}, v27')
        k('s_waitcnt lgkmcnt(0)')
        k('v_max_f32 v27, v27, v19')
    k(f's_mov_b32 s55, {LOG2E}')
    for i in range(12):
        k(f'v_sub_f32 v{144+i}, v{144+i}, v27')
        k(f'v_mul_f32 v{144+i}, s55, v{144+i}')
        k(f'v_exp_f32 v{144+i}, v{144+i}')
    k('s_nop 0')
    k('v_add_f32 v27, v144, v145')
    for i in range(2, 12): k(f'v_add_f32 v27, v27, v{144+i}')
    for ad in (17, 18):
        k(f'ds_bpermute_b32 v19, v{ad}, v27')
        k('s_waitcnt lgkmcnt(0)')
        k('v_add_f32 v27, v27, v19')
    k('v_rcp_f32 v27, v27')
    k('s_nop 0')
    for i in range(12): k(f'v_mul_f32 v{144+i}, v{144+i}, v27')
    k('v_cvt_pk_bf16_f32 v156, v144, v145')
    k('v_cvt_pk_bf16_f32 v157, v146, v147')
    k('v_cvt_pk_bf16_f32 v158, v148, v149')
    k('v_cvt_pk_bf16_f32 v159, v150, v151')
    k('v_cvt_pk_bf16_f32 v160, v152, v153')
    k('v_cvt_pk_bf16_f32 v161, v154, v155')
    k('v_mov_b32 v162, 0')
    k('v_mov_b32 v163, 0')
    OT = 96
    VM = 164
    for a in range(7):
        k(f'v_cndmask_b32 v{VM+4*a}, 0, v{128+2*a}, s[62:63]')
        k(f'v_cndmask_b32 v{VM+4*a+1}, 0, v{129+2*a}, s[62:63]')
        k(f'v_mov_b32 v{VM+4*a+2}, 0')
        k(f'v_mov_b32 v{VM+4*a+3}, 0')
    k(f'v_cndmask_b32 v144, 0, v142, s[62:63]')
    k(f'v_cndmask_b32 v145, 0, v143, s[62:63]')
    k('v_mov_b32 v146, 0')
    k('v_mov_b32 v147, 0')
    for i in range(32): k(f'v_mov_b32 v{OT+i}, 0')
    k('s_nop 1')
    for a in range(8):
        k(f'v_mfma_f32_16x16x32_bf16 v[{OT+4*a}:{OT+4*a+3}], v[{VX+4*a}:{VX+4*a+3}], v[156:159], v[{OT+4*a}:{OT+4*a+3}]')
    for a in range(8):
        vmr = VM+4*a if a < 7 else 144
        k(f'v_mfma_f32_16x16x32_bf16 v[{OT+4*a}:{OT+4*a+3}], v[{vmr}:{vmr+3}], v[160:163], v[{OT+4*a}:{OT+4*a+3}]')
    k('s_nop 7')
    k('s_nop 1')
    for u in range(4):
        for h2 in range(2):
            a = 2*u + h2
            k(f'v_cvt_pk_bf16_f32 v{128+4*u+2*h2}, v{OT+4*a}, v{OT+4*a+1}')
            k(f'v_cvt_pk_bf16_f32 v{129+4*u+2*h2}, v{OT+4*a+2}, v{OT+4*a+3}')
    for i in range(8): k(f'v_mov_b32 v{148+i}, 0')
    k('s_nop 1')
    for u in range(4):
        for tile in range(2):
            aw = 96 + (tile*4+u)*4
            k(f'v_mfma_f32_16x16x32_bf16 v[{148+4*tile}:{151+4*tile}], v[{128+4*u}:{131+4*u}], a[{aw}:{aw+3}], v[{148+4*tile}:{151+4*tile}]')
    k('s_nop 7')
    k('s_nop 1')
    k('s_mov_b64 s[60:61], exec')
    k('s_mov_b64 exec, 0xffffffff')
    for tile in range(2):
        for r in range(4):
            k(f'ds_write_b32 v15, v{148+4*tile+r} offset:{64*tile + r*528}')
    k('s_mov_b64 exec, s[60:61]')
    k('s_waitcnt lgkmcnt(0)')
    k('s_barrier')
    for i in range(4):
        k(f'ds_read_b32 v{148+i}, v7 offset:{(i>>1)*528 + (i&1)*256}')
    stamp(6)
    k('s_lshl_b32 s55, s53, 15')
    for i in range(4):
        k(f's_waitcnt lgkmcnt({3-i})')
        k(f's_add_u32 s56, s55, {(i>>1)*4096 + (i&1)*256}')
        k(f'buffer_atomic_add_f32 v{148+i}, v8, s[20:23], s56 offen')
    k('s_waitcnt vmcnt(0)')
    k('s_barrier')
    nsig = k.label('nsig2')
    k('s_cmp_lg_u32 s36, 0')
    k(f's_cbranch_scc1 {nsig}')
    k('s_lshl_b32 s55, s53, 11')
    k('s_and_b32 s56, s90, 15')
    k('s_lshl_b32 s56, s56, 7')
    k('s_add_u32 s55, s55, s56')
    k(f's_add_u32 s55, s55, {256*1024}')
    k('s_mov_b64 s[60:61], exec')
    k('s_mov_b64 exec, 1')
    k('v_mov_b32 v27, s55')
    k('buffer_atomic_add v26, v27, s[24:27], 0 offen')
    k('s_mov_b64 exec, s[60:61]')
    k.put(nsig)
    stamp(7)
    if prof:
        np_ = k.label('np')
        k('s_cmp_lg_u32 s53, 20')
        k(f's_cbranch_scc1 {np_}')
        k('s_cmp_lg_u32 s36, 0')
        k(f's_cbranch_scc1 {np_}')
        srd_off(k, 96, 4, 5, flag_off + 1024*1024, 65536)
        k('s_lshl_b32 s95, s90, 5')
        for i in range(8):
            k(f'v_mov_b32 v27, s{64+i}')
            k(f'v_mov_b32 v19, {4*i}')
            k('s_mov_b64 s[60:61], exec')
            k('s_mov_b64 exec, 1')
            k('buffer_store_dword v27, v19, s[96:99], s95 offen')
            k('s_mov_b64 exec, s[60:61]')
        k.put(np_)
    k('s_add_u32 s53, s53, 1')
    k(f's_branch {loop}')
    k.put(done)
    return k
```

```python
from asmlib import *
import os
SCALE = '0x3db504f3'
LOG2E = '0x3fb8aa3b'

def gen_rec4(name, qkv_off, mqkv_off, acc_off, flag_off, prof=False):
    k = Kern(name, nvgpr=200, nagpr=128, nsgpr=102)
    k.grid, k.block, k.lds = 256, 256, 131072
    done = k.label('done')
    def stamp(i):
        if prof:
            k('s_memtime s[82:83]')
            k('s_waitcnt lgkmcnt(0)')
            k(f's_mov_b32 s{64+i}, s82')
    VXL, KXL, ACCL, RED, QKL, OUTL = 0, 16384, 32768, 69632, 77824, 86016
    k('s_cmp_ge_u32 s2, 256')
    k(f's_cbranch_scc1 {done}')
    k(f's_load_dwordx2 s[4:5], s[0:1], {ARG["ws"]}')
    k(f's_load_dwordx2 s[6:7], s[0:1], {ARG["mem0"]}')
    k(f's_load_dwordx2 s[40:41], s[0:1], {ARG["Wq"]}')
    k(f's_load_dwordx2 s[42:43], s[0:1], {ARG["Wk"]}')
    k(f's_load_dwordx2 s[44:45], s[0:1], {ARG["Wv"]}')
    k(f's_load_dwordx2 s[46:47], s[0:1], {ARG["Wo"]}')
    k('v_and_b32 v1, 63, v0')
    k('v_lshrrev_b32 v2, 6, v0')
    k('s_nop 0')
    k('v_readfirstlane_b32 s36, v2')
    k('v_and_b32 v2, 15, v1')
    k('v_lshrrev_b32 v3, 4, v1')
    k('s_waitcnt lgkmcnt(0)')
    srd_off(k, 24, 4, 5, flag_off, 512*1024)
    k('s_getreg_b32 s90, hwreg(HW_REG_XCC_ID)')
    k('s_and_b32 s90, s90, 7')
    k('v_mov_b32 v26, 1')
    tk = k.label('tk')
    k('s_cmp_lg_u32 s36, 0')
    k(f's_cbranch_scc1 {tk}')
    k('s_mov_b64 s[60:61], exec')
    k('s_mov_b64 exec, 1')
    k('s_lshl_b32 s91, s90, 7')
    k(f's_add_u32 s91, s91, {448*1024}')
    k('v_mov_b32 v27, s91')
    k('v_mov_b32 v19, 1')
    k('buffer_atomic_add v19, v27, s[24:27], 0 offen sc0 sc1')
    k('s_waitcnt vmcnt(0)')
    k(f'v_mov_b32 v27, {448*1024 + 2048}')
    k('buffer_atomic_add v26, v27, s[24:27], 0 offen sc1')
    ip = k.label('ip')
    k.put(ip)
    k('buffer_load_dword v20, v27, s[24:27], 0 offen sc1')
    k('s_waitcnt vmcnt(0)')
    k('v_cmp_gt_u32 vcc, 256, v20')
    k(f's_cbranch_vccnz {ip}')
    k('s_mov_b64 exec, 0xff')
    k('v_lshlrev_b32 v27, 7, v1')
    k(f'v_add_u32 v27, {448*1024}, v27')
    k('buffer_load_dword v20, v27, s[24:27], 0 offen sc1')
    k('s_waitcnt vmcnt(0)')
    k('v_cmp_ne_u32 vcc, 32, v20')
    k('s_mov_b64 exec, 1')
    k('v_mov_b32 v20, 0')
    k('ds_write_b32 v20, v19')
    k('v_mov_b32 v21, vcc_lo')
    k('ds_write_b32 v20, v21 offset:4')
    k('s_mov_b64 exec, s[60:61]')
    k('s_waitcnt lgkmcnt(0)')
    k.put(tk)
    k('s_barrier')
    k('v_mov_b32 v20, 0')
    k('ds_read_b64 v[20:21], v20')
    k('s_waitcnt lgkmcnt(0)')
    k('v_readfirstlane_b32 s91, v20')
    k('v_readfirstlane_b32 s92, v21')
    k('s_barrier')
    k('s_lshl_b32 s90, s90, 5')
    k('s_add_u32 s90, s90, s91')
    k('s_cmp_eq_u32 s92, 0')
    k('s_cselect_b32 s93, 1, 0')
    if os.environ.get('NOFAST'): k('s_mov_b32 s93, 0')
    k('s_cmp_eq_u32 s93, 1')
    k('s_cselect_b32 s90, s90, s2')
    k('s_lshr_b32 s34, s90, 3')
    k('s_and_b32 s35, s90, 7')
    k('s_lshl_b32 s37, s34, 8')
    k('s_lshl_b32 s38, s35, 5')
    k('s_add_u32 s37, s37, s38')
    for c in range(3):
        k(f's_add_u32 s{8+4*c}, s{40+2*c}, s37')
        k(f's_addc_u32 s{9+4*c}, s{41+2*c}, 0')
        k(f's_and_b32 s{9+4*c}, s{9+4*c}, 0xffff')
        k(f's_sub_u32 s{10+4*c}, {1024*8192}, s37')
        k(f's_mov_b32 s{11+4*c}, 0x00020000')
    k('s_lshl_b32 s38, s34, 18')
    k('s_lshl_b32 s39, s35, 8')
    k('s_add_u32 s38, s38, s39')
    k('s_add_u32 s20, s46, s38')
    k('s_addc_u32 s21, s47, 0')
    k('s_and_b32 s21, s21, 0xffff')
    k(f's_sub_u32 s22, {4096*2048}, s38')
    k('s_mov_b32 s23, 0x00020000')
    k('v_lshrrev_b32 v4, 1, v1')
    k('v_lshlrev_b32 v4, 13, v4')
    k('v_and_b32 v5, 1, v1')
    k('v_lshl_add_u32 v4, v5, 4, v4')
    for c in range(3):
        for i in range(8):
            k(f's_lshl_b32 s38, s36, 3')
            k(f's_add_u32 s38, s38, {i}')
            k('s_lshl_b32 s39, s38, 18')
            k('s_lshl_b32 s38, s38, 10')
            k(f's_add_u32 m0, s38, {c*32768}')
            k(f'buffer_load_dwordx4 v4, s[{8+4*c}:{11+4*c}], s39 offen lds')
    k('v_lshrrev_b32 v4, 4, v1')
    k('v_lshlrev_b32 v4, 11, v4')
    k('v_lshl_add_u32 v4, v2, 4, v4')
    for i in range(8):
        k(f's_lshl_b32 s38, s36, 3')
        k(f's_add_u32 s38, s38, {i}')
        k('s_lshl_b32 s39, s38, 13')
        k('s_lshl_b32 s38, s38, 10')
        k(f's_add_u32 m0, s38, {98304}')
        k(f'buffer_load_dwordx4 v4, s[20:23], s39 offen lds')
    k('s_waitcnt vmcnt(0)')
    k('s_barrier')
    k('v_lshrrev_b32 v4, 2, v2')
    k('v_and_b32 v5, 3, v2')
    k('v_lshl_add_u32 v4, v3, 2, v4')
    k('v_lshlrev_b32 v4, 5, v4')
    k('v_lshl_add_u32 v4, v5, 3, v4')
    k('s_lshl_b32 s38, s36, 13')
    k('v_add_u32 v4, s38, v4')
    for c in range(3):
        if c == 2: k('v_add_u32 v4, 65536, v4')
        for t in range(8):
            k(f'ds_read_b64_tr_b16 v[8:9], v4 offset:{(c&1)*32768 + t*1024}')
            k(f'ds_read_b64_tr_b16 v[10:11], v4 offset:{(c&1)*32768 + t*1024 + 512}')
            k('s_waitcnt lgkmcnt(0)')
            for e in range(4):
                k(f'v_accvgpr_write_b32 a{(c*8+t)*4+e}, v{8+e}')
    k('v_lshrrev_b32 v4, 2, v2')
    k('v_lshl_add_u32 v4, v3, 2, v4')
    k('v_lshlrev_b32 v4, 8, v4')
    k('v_lshl_add_u32 v4, v5, 3, v4')
    k('s_lshl_b32 s38, s36, 6')
    k('s_add_u32 s38, s38, 98304')
    k('v_add_u32 v4, s38, v4')
    for tile in range(2):
        for u in range(4):
            k(f'ds_read_b64_tr_b16 v[8:9], v4 offset:{u*8192 + tile*32}')
            k(f'ds_read_b64_tr_b16 v[10:11], v4 offset:{u*8192 + tile*32 + 4096}')
            k('s_waitcnt lgkmcnt(0)')
            for e in range(4):
                k(f'v_accvgpr_write_b32 a{96+(tile*4+u)*4+e}, v{8+e}')
    k('s_barrier')
    srd_off(k, 8, 4, 5, qkv_off, 2048*24576)
    srd_off(k, 12, 4, 5, mqkv_off, 8*1024*1024)
    srd_off(k, 16, 4, 5, mqkv_off + 8*1024*1024, 4*1024*1024)
    srd_off(k, 20, 4, 5, acc_off, 2*1024*1024)
    srd(k, 28, 6, 7, 16384)
    k('v_and_b32 v5, 7, v2')
    k('v_lshlrev_b32 v5, 11, v5')
    k('v_lshl_add_u32 v5, v3, 3, v5')
    k('s_lshl_b32 s38, s36, 9')
    k('v_add_u32 v5, s38, v5')
    k('s_mov_b32 s38, 24576')
    k('v_mul_lo_u32 v6, s38, v3')
    k('v_lshlrev_b32 v7, 1, v3')
    k('v_xor_b32 v7, v7, v2')
    k('v_lshl_add_u32 v6, v7, 4, v6')
    k('s_lshl_b32 s39, s34, 8')
    k('v_add_u32 v6, s39, v6')
    k('v_add_u32 v6, 16384, v6')
    for v in range(4):
        k('v_mul_lo_u32 v%d, s38, v3' % (192+v))
        k(f'v_add_u32 v7, {4*v}, v3')
        k('v_xor_b32 v7, v7, v2')
        k('v_lshl_add_u32 v%d, v7, 4, v%d' % (192+v, 192+v))
        k('v_add_u32 v%d, s39, v%d' % (192+v, 192+v))
        k('v_add_u32 v%d, 8192, v%d' % (192+v, 192+v))
    for u in range(4):
        k(f'v_add_u32 v7, {4*u}, v3')
        k('v_xor_b32 v7, v7, v2')
        k('v_lshlrev_b32 v7, 4, v7')
        k(f'v_lshl_add_u32 v{196+u}, v2, 8, v7')
        k(f'v_add_u32 v{196+u}, {KXL}, v{196+u}')
    k('v_lshrrev_b32 v7, 2, v2')
    k('v_and_b32 v8, 3, v2')
    k('s_movk_i32 s38, 1152')
    k('v_mul_lo_u32 v14, s38, v3')
    k('v_lshl_add_u32 v14, v7, 8, v14')
    k('v_lshl_add_u32 v14, v8, 3, v14')
    k('v_lshlrev_b32 v13, 5, v7')
    k('v_lshlrev_b32 v9, 14, v3')
    k('v_lshlrev_b32 v7, 1, v3')
    k('v_xor_b32 v8, v7, v2')
    k('v_lshl_add_u32 v12, v8, 4, v9')
    k('v_add_u32 v12, s39, v12')
    k('v_add_u32 v7, 8, v7')
    k('v_xor_b32 v8, v7, v2')
    k('v_lshl_add_u32 v11, v8, 4, v9')
    k('v_add_u32 v11, s39, v11')
    k('v_add_u32 v11, 65536, v11')
    k('v_lshlrev_b32 v10, 4, v1')
    k('v_and_b32 v7, 7, v2')
    k('v_lshlrev_b32 v8, 1, v7')
    for u in range(4):
        k(f'v_add_u32 v9, {4*u}, v3')
        k('v_xor_b32 v9, v9, v8')
        k('v_lshlrev_b32 v9, 4, v9')
        k(f'v_lshl_add_u32 v{28+u}, v7, 8, v9')
        k(f'v_add_u32 v{28+u}, {QKL}, v{28+u}')
    k('v_and_b32 v7, 1, v3')
    k('v_lshlrev_b32 v9, 4, v2')
    k('v_lshl_add_u32 v9, v7, 3, v9')
    k(f'v_add_u32 v9, {QKL+4096}, v9')
    k('v_and_b32 v7, 7, v2')
    k('s_movk_i32 s38, 1088')
    k('v_mul_lo_u32 v4, s38, v7')
    k('v_lshl_add_u32 v4, v3, 4, v4')
    k('s_mul_i32 s38, s36, 8704')
    k(f's_add_u32 s38, s38, {ACCL}')
    k('v_add_u32 v4, s38, v4')
    k('s_movk_i32 s38, 2112')
    k('v_mul_lo_u32 v15, s38, v3')
    k('v_lshl_add_u32 v15, v2, 2, v15')
    k('s_lshl_b32 s38, s36, 7')
    k(f's_add_u32 s38, s38, {OUTL}')
    k('v_add_u32 v15, s38, v15')
    k('s_mul_i32 s38, s36, 1056')
    k(f's_add_u32 s38, s38, {OUTL}')
    k('v_lshl_add_u32 v7, v1, 2, s38')
    k('s_lshl_b32 s38, s36, 13')
    k('s_lshl_b32 s52, s35, 9')
    k('s_add_u32 s38, s38, s52')
    k('v_lshl_add_u32 v8, v1, 2, s38')
    k('v_lshlrev_b32 v16, 8, v3')
    k('v_lshl_add_u32 v16, v2, 2, v16')
    k('s_mul_i32 s38, s36, 1536')
    k('v_add_u32 v16, s38, v16')
    k(f'v_add_u32 v16, {RED}, v16')
    k('v_xor_b32 v17, 16, v1')
    k('v_lshlrev_b32 v17, 2, v17')
    k('v_xor_b32 v18, 32, v1')
    k('v_lshlrev_b32 v18, 2, v18')
    k('v_lshrrev_b32 v19, 3, v1')
    k('v_and_b32 v20, 7, v1')
    k('v_lshlrev_b32 v21, 6, v19')
    k('v_lshl_add_u32 v21, v20, 3, v21')
    k('s_lshl_b32 s38, s36, 9')
    k('v_add_u32 v21, s38, v21')
    k(f'v_add_u32 v21, {RED}, v21')
    k('v_lshlrev_b32 v22, 14, v19')
    k('v_lshl_add_u32 v22, v20, 2, v22')
    k('s_lshl_b32 s38, s36, 13')
    k('s_add_u32 s38, s38, s37')
    k('v_add_u32 v22, s38, v22')
    k('v_lshrrev_b32 v19, 2, v1')
    k('v_and_b32 v20, 3, v1')
    k('v_lshlrev_b32 v23, 7, v20')
    k('v_lshl_add_u32 v23, v19, 2, v23')
    k('v_add_u32 v23, %d, v23' % (RED + 1024))
    k('v_lshlrev_b32 v24, 4, v19')
    k('v_lshl_add_u32 v24, v20, 2, v24')
    k('s_lshl_b32 s38, s37, 3')
    k('v_add_u32 v24, s38, v24')
    k('v_lshlrev_b32 v25, 7, v1')
    k('v_add_u32 v25, %d, v25' % (256*1024))
    k('v_mov_b32 v26, 1')
    k('s_mov_b32 s53, 0')
    KX, VX, MEM, MP = 32, 64, 96, 160
    def prefetch():
        k('s_mul_i32 s54, s53, %d' % (32*24576))
        for ii in range(2):
            k(f's_lshl_b32 s55, s36, 1')
            k(f's_add_u32 s55, s55, {ii}')
            k('s_mul_i32 s56, s55, %d' % (4*24576))
            k('s_add_u32 s56, s56, s54')
            k('s_mul_i32 s57, s55, 1152')
            k(f's_add_u32 m0, s57, {VXL}')
            k('buffer_load_dwordx4 v6, s[8:11], s56 offen lds')
            k('s_lshl_b32 s57, s55, 10')
            k(f's_add_u32 m0, s57, {KXL}')
            lo = k.label('kv'); le = k.label('ke')
            k('s_bitcmp1_b32 s36, 0')
            k(f's_cbranch_scc1 {lo}')
            k(f'buffer_load_dwordx4 v{192+ii}, s[8:11], s56 offen lds')
            k(f's_branch {le}')
            k.put(lo)
            k(f'buffer_load_dwordx4 v{194+ii}, s[8:11], s56 offen lds')
            k.put(le)
    loop = k.label('loop')
    k.put(loop)
    stamp(0)
    prefetch()
    k('s_waitcnt vmcnt(0)')
    k('s_barrier')
    for tile in range(2):
        for u in range(4):
            r = KX + (tile*4+u)*4
            k(f'ds_read_b128 v[{r}:{r+3}], v{196+u} offset:{tile*4096}')
    for a in range(8):
        k(f'v_xor_b32 v27, {a*32}, v13')
        k('v_add_u32 v27, v27, v14')
        k(f'ds_read_b64_tr_b16 v[{VX+4*a}:{VX+4*a+1}], v27 offset:{VXL}')
        k(f'ds_read_b64_tr_b16 v[{VX+4*a+2}:{VX+4*a+3}], v27 offset:{VXL+4*1152}')
    first = k.label('first'); haveM = k.label('haveM')
    k('s_cmp_eq_u32 s53, 0')
    k(f's_cbranch_scc1 {first}')
    k('s_sub_u32 s55, s53, 1')
    k('s_lshl_b32 s56, s55, 11')
    poll = k.label('poll2'); pdone = k.label('p2d'); pskip = k.label('p2s')
    k('s_cmp_lg_u32 s36, 0')
    k(f's_cbranch_scc1 {pskip}')
    k('s_mov_b64 s[60:61], exec')
    k('s_mov_b64 exec, 0xffff')
    k.put(poll)
    k('buffer_load_dword v27, v25, s[24:27], s56 offen sc1')
    k('s_waitcnt vmcnt(0)')
    k('v_cmp_le_u32 vcc, 16, v27')
    k('s_cmp_eq_u64 vcc, exec')
    k(f's_cbranch_scc1 {pdone}')
    k(f's_branch {poll}')
    k.put(pdone)
    k('s_mov_b64 exec, s[60:61]')
    k.put(pskip)
    k('s_barrier')
    stamp(1)
    k('s_lshl_b32 s56, s55, 15')
    k('s_lshl_b32 s58, s36, 10')
    k('s_add_u32 s56, s56, s58')
    k('s_mul_i32 s58, s36, 8704')
    for r in range(8):
        k(f's_add_u32 s57, s56, {r*4096}')
        k(f's_add_u32 m0, s58, {ACCL + r*1088}')
        k('buffer_load_dwordx4 v10, s[20:23], s57 offen sc1 lds')
    k('s_waitcnt vmcnt(0)')
    for t in range(16):
        k(f'ds_read_b128 v[{MEM+4*t}:{MEM+4*t+3}], v4 offset:{64*t}')
    for t in range(8):
        k(f's_waitcnt lgkmcnt({14-2*t})')
        for e in range(4):
            k(f'v_cvt_pk_bf16_f32 v{MP+4*t+e}, v{MEM+8*t+2*e}, v{MEM+8*t+2*e+1}')
    k(f's_branch {haveM}')
    k.put(first)
    for t in range(8):
        k(f'buffer_load_dwordx2 v[{MP+4*t}:{MP+4*t+1}], v5, s[28:31], 0 offen offset:{64*t}')
        k(f'buffer_load_dwordx2 v[{MP+4*t+2}:{MP+4*t+3}], v5, s[28:31], 0 offen offset:{64*t+32}')
    k('s_waitcnt vmcnt(0)')
    k.put(haveM)
    stamp(2)
    for t in range(8):
        for c in range(3):
            cs = '0' if t == 0 else f'v[{96+4*c}:{99+4*c}]'
            k(f'v_mfma_f32_16x16x32_bf16 v[{96+4*c}:{99+4*c}], v[{MP+4*t}:{MP+4*t+3}], a[{(c*8+t)*4}:{(c*8+t)*4+3}], {cs}')
    k('s_nop 7')
    k('s_nop 1')
    k('s_mov_b64 s[60:61], exec')
    k('s_mov_b64 exec, 0xffffffff')
    for c in range(3):
        for r in range(4):
            k(f'ds_write_b32 v16, v{96+4*c+r} offset:{c*512 + r*64}')
    k('s_mov_b64 exec, s[60:61]')
    k('s_waitcnt lgkmcnt(0)')
    k('s_barrier')
    w2 = k.label('w2'); rd = k.label('rd')
    k('s_cmp_eq_u32 s36, 3')
    k(f's_cbranch_scc1 {rd}')
    k('s_cmp_eq_u32 s36, 2')
    k(f's_cbranch_scc1 {w2}')
    for w in range(4):
        k(f'ds_read_b64 v[{108+2*w}:{109+2*w}], v21 offset:{w*1536}')
    k('s_waitcnt lgkmcnt(0)')
    for w in range(1, 4):
        k(f'v_add_f32 v108, v108, v{108+2*w}')
        k(f'v_add_f32 v109, v109, v{109+2*w}')
    k('v_cvt_pk_bf16_f32 v108, v108, v109')
    k('s_lshl_b32 s55, s53, 17')
    _a = k.label('sl'); _b = k.label('se')
    k('s_cmp_eq_u32 s93, 1')
    k(f's_cbranch_scc1 {_a}')
    k('buffer_store_dword v108, v22, s[12:15], s55 offen sc1')
    k(f's_branch {_b}')
    k.put(_a)
    k('buffer_store_dword v108, v22, s[12:15], s55 offen')
    k.put(_b)
    k(f's_branch {rd}')
    k.put(w2)
    for w in range(4):
        k(f'ds_read_b32 v{108+2*w}, v23 offset:{w*1536}')
        k(f'ds_read_b32 v{109+2*w}, v23 offset:{w*1536+64}')
    k('s_waitcnt lgkmcnt(0)')
    for w in range(1, 4):
        k(f'v_add_f32 v108, v108, v{108+2*w}')
        k(f'v_add_f32 v109, v109, v{109+2*w}')
    k('v_cvt_pk_bf16_f32 v108, v108, v109')
    k('s_lshl_b32 s55, s53, 16')
    _a = k.label('sl'); _b = k.label('se')
    k('s_cmp_eq_u32 s93, 1')
    k(f's_cbranch_scc1 {_a}')
    k('buffer_store_dword v108, v24, s[16:19], s55 offen sc1')
    k(f's_branch {_b}')
    k.put(_a)
    k('buffer_store_dword v108, v24, s[16:19], s55 offen')
    k.put(_b)
    k.put(rd)
    stamp(3)
    k('s_waitcnt vmcnt(0)')
    k('s_barrier')
    stamp(4)
    k('s_cmp_eq_u32 s53, 63')
    k(f's_cbranch_scc1 {done}')
    k('s_lshl_b32 s55, s53, 5')
    k('s_add_u32 s55, s55, s34')
    k('s_lshl_b32 s55, s55, 7')
    nsig = k.label('nsig')
    k('s_cmp_lg_u32 s36, 0')
    k(f's_cbranch_scc1 {nsig}')
    k('s_mov_b64 s[60:61], exec')
    k('s_mov_b64 exec, 1')
    k('v_mov_b32 v27, s55')
    pdone = k.label('p1d'); fastp = k.label('fp')
    k('s_cmp_eq_u32 s93, 1')
    k(f's_cbranch_scc1 {fastp}')
    k('buffer_atomic_add v26, v27, s[24:27], 0 offen sc1')
    poll = k.label('poll1')
    k.put(poll)
    k('buffer_load_dword v19, v27, s[24:27], 0 offen sc1')
    k('s_waitcnt vmcnt(0)')
    k('v_cmp_le_u32 vcc, 8, v19')
    k(f's_cbranch_vccnz {pdone}')
    k(f's_branch {poll}')
    k.put(fastp)
    k('buffer_atomic_add v26, v27, s[24:27], 0 offen')
    k('s_mov_b32 s94, 0')
    poll = k.label('poll1f')
    k.put(poll)
    k('buffer_load_dword v19, v27, s[24:27], 0 offen sc1')
    k('s_waitcnt vmcnt(0)')
    k('v_cmp_le_u32 vcc, 8, v19')
    k(f's_cbranch_vccnz {pdone}')
    k('s_add_u32 s94, s94, 1')
    k('s_cmp_lt_u32 s94, 200000')
    k(f's_cbranch_scc1 {poll}')
    k.put(pdone)
    k('s_mov_b64 exec, s[60:61]')
    k.put(nsig)
    k('s_barrier')
    stamp(5)
    l3 = k.label('l3'); l2 = k.label('l2')
    k('s_cmp_eq_u32 s36, 3')
    k(f's_cbranch_scc1 {l3}')
    k('s_cmp_eq_u32 s36, 2')
    k(f's_cbranch_scc1 {l2}')
    k('s_lshl_b32 s55, s53, 17')
    k('s_lshl_b32 s56, s36, 13')
    k('s_add_u32 s55, s55, s56')
    k('s_lshl_b32 s56, s36, 11')
    k(f's_add_u32 m0, s56, {QKL}')
    _a = k.label('sl'); _b = k.label('se')
    k('s_cmp_eq_u32 s93, 1')
    k(f's_cbranch_scc1 {_a}')
    k('buffer_load_dwordx4 v12, s[12:15], s55 offen sc1 lds')
    k(f's_branch {_b}')
    k.put(_a)
    k('buffer_load_dwordx4 v12, s[12:15], s55 offen lds')
    k.put(_b)
    k(f's_add_u32 m0, s56, {QKL+1024}')
    _a = k.label('sl'); _b = k.label('se')
    k('s_cmp_eq_u32 s93, 1')
    k(f's_cbranch_scc1 {_a}')
    k('buffer_load_dwordx4 v11, s[12:15], s55 offen sc1 lds')
    k(f's_branch {_b}')
    k.put(_a)
    k('buffer_load_dwordx4 v11, s[12:15], s55 offen lds')
    k.put(_b)
    k(f's_branch {l3}')
    k.put(l2)
    k('s_lshl_b32 s55, s53, 16')
    k('s_lshl_b32 s56, s34, 11')
    k('s_add_u32 s55, s55, s56')
    k(f's_mov_b32 m0, {QKL+4096}')
    k('s_add_u32 s56, s55, 1024')
    _a = k.label('sl'); _b = k.label('se')
    k('s_cmp_eq_u32 s93, 1')
    k(f's_cbranch_scc1 {_a}')
    k('buffer_load_dwordx4 v10, s[16:19], s55 offen sc1 lds')
    k(f's_branch {_b}')
    k.put(_a)
    k('buffer_load_dwordx4 v10, s[16:19], s55 offen lds')
    k.put(_b)
    k(f's_mov_b32 m0, {QKL+4096+1024}')
    _a = k.label('sl'); _b = k.label('se')
    k('s_cmp_eq_u32 s93, 1')
    k(f's_cbranch_scc1 {_a}')
    k('buffer_load_dwordx4 v10, s[16:19], s56 offen sc1 lds')
    k(f's_branch {_b}')
    k.put(_a)
    k('buffer_load_dwordx4 v10, s[16:19], s56 offen lds')
    k.put(_b)
    k.put(l3)
    k('s_waitcnt vmcnt(0)')
    k('s_barrier')
    for u in range(4):
        k(f'ds_read_b128 v[{96+4*u}:{99+4*u}], v{28+u}')
    for u in range(4):
        k(f'ds_read_b128 v[{112+4*u}:{115+4*u}], v{28+u} offset:2048')
    for a in range(8):
        k(f'ds_read_b64 v[{128+2*a}:{129+2*a}], v9 offset:{256*a}')
    k('s_waitcnt lgkmcnt(12)')
    for u in range(4):
        for tile in range(2):
            r = KX + (tile*4+u)*4
            cs = '0' if u == 0 else f'v[{144+4*tile}:{147+4*tile}]'
            k(f'v_mfma_f32_16x16x32_bf16 v[{144+4*tile}:{147+4*tile}], v[{r}:{r+3}], v[{96+4*u}:{99+4*u}], {cs}')
    k('s_waitcnt lgkmcnt(8)')
    for u in range(4):
        cs = '0' if u == 0 else 'v[152:155]'
        k(f'v_mfma_f32_16x16x32_bf16 v[152:155], v[{112+4*u}:{115+4*u}], v[{96+4*u}:{99+4*u}], {cs}')
    k('s_nop 7')
    k('s_nop 1')
    k(f's_mov_b32 s55, {SCALE}')
    for i in range(0, 12, 2):
        a, b = 144+i, 145+i
        k(f'v_cvt_pk_bf16_f32 v27, v{a}, v{b}')
        k(f'v_lshlrev_b32 v{a}, 16, v27')
        k(f'v_and_b32 v{b}, 0xffff0000, v27')
        k(f'v_mul_f32 v{a}, s55, v{a}')
        k(f'v_mul_f32 v{b}, s55, v{b}')
        k(f'v_cvt_pk_bf16_f32 v27, v{a}, v{b}')
        k(f'v_lshlrev_b32 v{a}, 16, v27')
        k(f'v_and_b32 v{b}, 0xffff0000, v27')
    k('v_cmp_gt_u32 s[62:63], 2, v3')
    k('v_mov_b32 v19, 0xf149f2ca')
    k('s_nop 1')
    for i in range(8, 12):
        k(f'v_cndmask_b32 v{144+i}, v19, v{144+i}, s[62:63]')
    k('v_max3_f32 v27, v144, v145, v146')
    k('v_max3_f32 v27, v27, v147, v148')
    k('v_max3_f32 v27, v27, v149, v150')
    k('v_max3_f32 v27, v27, v151, v152')
    k('v_max3_f32 v27, v27, v153, v154')
    k('v_max_f32 v27, v27, v155')
    def xred(op):
        k('v_mov_b32 v19, v27')
        k('s_nop 1')
        k('v_permlane16_swap_b32 v27, v19')
        k('s_nop 1')
        k(f'{op} v27, v27, v19')
        k('v_mov_b32 v19, v27')
        k('s_nop 1')
        k('v_permlane32_swap_b32 v27, v19')
        k('s_nop 1')
        k(f'{op} v27, v27, v19')
    xred('v_max_f32')
    k(f's_mov_b32 s55, {LOG2E}')
    k('v_mul_f32 v27, s55, v27')
    for i in range(12):
        k(f'v_fma_f32 v{144+i}, s55, v{144+i}, -v27')
        k(f'v_exp_f32 v{144+i}, v{144+i}')
    k('s_nop 0')
    k('v_add_f32 v27, v144, v145')
    for i in range(2, 12): k(f'v_add_f32 v27, v27, v{144+i}')
    xred('v_add_f32')
    k('v_rcp_f32 v27, v27')
    k('s_nop 0')
    for i in range(12): k(f'v_mul_f32 v{144+i}, v{144+i}, v27')
    k('v_cvt_pk_bf16_f32 v156, v144, v145')
    k('v_cvt_pk_bf16_f32 v157, v146, v147')
    k('v_cvt_pk_bf16_f32 v158, v148, v149')
    k('v_cvt_pk_bf16_f32 v159, v150, v151')
    k('v_cvt_pk_bf16_f32 v160, v152, v153')
    k('v_cvt_pk_bf16_f32 v161, v154, v155')
    OT = 96
    k('s_nop 1')
    for a in range(8):
        k(f'v_mfma_f32_16x16x32_bf16 v[{OT+4*a}:{OT+4*a+3}], v[{VX+4*a}:{VX+4*a+3}], v[156:159], 0')
    for a in range(8):
        k(f'v_mfma_f32_16x16x16_bf16 v[{OT+4*a}:{OT+4*a+3}], v[{128+2*a}:{129+2*a}], v[160:161], v[{OT+4*a}:{OT+4*a+3}]')
    k('s_nop 7')
    k('s_nop 1')
    for u in range(4):
        for h2 in range(2):
            a = 2*u + h2
            k(f'v_cvt_pk_bf16_f32 v{128+4*u+2*h2}, v{OT+4*a}, v{OT+4*a+1}')
            k(f'v_cvt_pk_bf16_f32 v{129+4*u+2*h2}, v{OT+4*a+2}, v{OT+4*a+3}')
    k('s_nop 1')
    for u in range(4):
        for tile in range(2):
            aw = 96 + (tile*4+u)*4
            cs = '0' if u == 0 else f'v[{148+4*tile}:{151+4*tile}]'
            k(f'v_mfma_f32_16x16x32_bf16 v[{148+4*tile}:{151+4*tile}], v[{128+4*u}:{131+4*u}], a[{aw}:{aw+3}], {cs}')
    k('s_nop 7')
    k('s_nop 1')
    k('s_mov_b64 s[60:61], exec')
    k('s_mov_b64 exec, 0xffffffff')
    for tile in range(2):
        for r in range(4):
            k(f'ds_write_b32 v15, v{148+4*tile+r} offset:{64*tile + r*528}')
    k('s_mov_b64 exec, s[60:61]')
    k('s_waitcnt lgkmcnt(0)')
    k('s_barrier')
    for i in range(4):
        k(f'ds_read_b32 v{148+i}, v7 offset:{(i>>1)*528 + (i&1)*256}')
    stamp(6)
    k('s_lshl_b32 s55, s53, 15')
    for i in range(4):
        k(f's_waitcnt lgkmcnt({3-i})')
        k(f's_add_u32 s56, s55, {(i>>1)*4096 + (i&1)*256}')
        k(f'buffer_atomic_add_f32 v{148+i}, v8, s[20:23], s56 offen')
    k('s_waitcnt vmcnt(0)')
    k('s_barrier')
    nsig = k.label('nsig2')
    k('s_cmp_lg_u32 s36, 0')
    k(f's_cbranch_scc1 {nsig}')
    k('s_lshl_b32 s55, s53, 11')
    k('s_and_b32 s56, s90, 15')
    k('s_lshl_b32 s56, s56, 7')
    k('s_add_u32 s55, s55, s56')
    k(f's_add_u32 s55, s55, {256*1024}')
    k('s_mov_b64 s[60:61], exec')
    k('s_mov_b64 exec, 1')
    k('v_mov_b32 v27, s55')
    k('buffer_atomic_add v26, v27, s[24:27], 0 offen')
    k('s_mov_b64 exec, s[60:61]')
    k.put(nsig)
    stamp(7)
    if prof:
        np_ = k.label('np')
        k('s_cmp_lg_u32 s53, 20')
        k(f's_cbranch_scc1 {np_}')
        k('s_cmp_lg_u32 s36, 0')
        k(f's_cbranch_scc1 {np_}')
        srd_off(k, 96, 4, 5, flag_off + 1024*1024, 65536)
        k('s_lshl_b32 s95, s90, 5')
        for i in range(8):
            k(f'v_mov_b32 v27, s{64+i}')
            k(f'v_mov_b32 v19, {4*i}')
            k('s_mov_b64 s[60:61], exec')
            k('s_mov_b64 exec, 1')
            k('buffer_store_dword v27, v19, s[96:99], s95 offen')
            k('s_mov_b64 exec, s[60:61]')
        k.put(np_)
    k('s_add_u32 s53, s53, 1')
    k(f's_branch {loop}')
    k.put(done)
    return k
```

```python
from asmlib import *

def gen_gemm(name, M, N, Kd, a_off, w_slots, w_ncols, out_off_or_arg, epi, WM, WN, TM, TN, BK=64, NBUF=3,
             res_kind=None, res_off=None, bias_slot=None, out_kind='ws', ldo=None):
    NW = WM * WN
    BM = WM * TM * 32
    BN = WN * TN * 32
    assert M % BM == 0 and N % BN == 0 and Kd % BK == 0 and BK == 64
    nbx = N // BN
    nby = M // BM
    ntiles = nbx * nby
    KT = Kd // BK
    lda2 = Kd * 2
    ldb2 = w_ncols * 2
    if ldo is None: ldo = N
    ldo2 = ldo * 2
    XS = BM * 128
    NBLK = BN // 64
    WS_ = NBLK * BK * 128
    STG = XS + WS_
    lds_bytes = STG * NBUF
    nX = BM // 8 // NW
    nWi = NBLK * 8 // NW
    assert nX * 8 * NW == BM and nWi * NW == NBLK * 8
    nacc = TM * TN * 16
    vXoffE, vXoffO, vWoff = 2, 3, 4
    vXr = 5
    vWr = 9
    vXa = 11
    vWa = 15
    vt = 17
    fX = 24
    fW = fX + 2 * TM * 4
    nv = fW + 2 * TN * 4
    nv = (nv + 3) // 4 * 4
    k = Kern(name, nvgpr=nv, nagpr=nacc, nsgpr=96)
    k.lds = lds_bytes
    k.grid = ntiles
    k.block = NW * 64
    done = k.label('done')
    k(f's_cmp_ge_u32 s2, {ntiles}')
    k(f's_cbranch_scc1 {done}')
    k(f's_load_dwordx2 s[4:5], s[0:1], {ARG["ws"]}')
    for i, sl in enumerate(w_slots):
        k(f's_load_dwordx2 s[{40+2*i}:{41+2*i}], s[0:1], {sl}')
    if out_kind == 'arg':
        k(f's_load_dwordx2 s[48:49], s[0:1], {out_off_or_arg}')
    if bias_slot is not None:
        k(f's_load_dwordx2 s[50:51], s[0:1], {bias_slot}')
    if res_kind == 'arg':
        k(f's_load_dwordx2 s[52:53], s[0:1], {res_off}')
    magic = (1 << 32) // nbx + 1
    k(f's_mov_b32 s34, {magic}')
    k('s_mul_hi_u32 s35, s2, s34')
    k(f's_mul_i32 s36, s35, {nbx}')
    k('s_sub_u32 s34, s2, s36')
    k('v_and_b32 v1, 63, v0')
    k('v_lshrrev_b32 v17, 6, v0')
    k('s_nop 0')
    k('v_readfirstlane_b32 s37, v17')
    k('s_waitcnt lgkmcnt(0)')
    k(f's_mul_i32 s38, s35, {BM*lda2}')
    k(f's_add_u32 s38, s38, {a_off}')
    srd_off(k, 8, 4, 5, 's38', BM * lda2)
    for b in range(NBLK):
        k(f's_mul_i32 s38, s34, {BN}')
        k(f's_add_u32 s38, s38, {64*b}')
        if len(w_slots) > 1:
            assert w_ncols == 4096
            k('s_lshr_b32 s39, s38, 12')
            k('s_and_b32 s38, s38, 4095')
            k('s_cmp_eq_u32 s39, 1')
            k('s_cselect_b32 s54, s42, s40')
            k('s_cselect_b32 s55, s43, s41')
            k('s_cmp_eq_u32 s39, 2')
            k('s_cselect_b32 s54, s44, s54')
            k('s_cselect_b32 s55, s45, s55')
        else:
            k('s_mov_b32 s54, s40')
            k('s_mov_b32 s55, s41')
        k('s_lshl_b32 s38, s38, 1')
        d = 12 + 4 * b
        k(f's_add_u32 s{d}, s54, s38')
        k(f's_addc_u32 s{d+1}, s55, 0')
        k(f's_and_b32 s{d+1}, s{d+1}, 0xffff')
        k(f's_sub_u32 s{d+2}, {Kd*ldb2}, s38')
        k(f's_mov_b32 s{d+3}, 0x00020000')
    if out_kind == 'arg':
        srd(k, 28, 48, 49, M * ldo2)
    else:
        srd_off(k, 28, 4, 5, out_off_or_arg, M * ldo2)
    if res_kind == 'arg':
        srd(k, 56, 52, 53, M * ldo2)
    elif res_kind == 'ws':
        srd_off(k, 56, 4, 5, res_off, M * ldo2)
    if bias_slot is not None:
        srd(k, 60, 50, 51, N * 2)
    k(f'v_lshrrev_b32 v17, 3, v1')
    k(f'v_and_b32 v18, 7, v1')
    k(f'v_lshrrev_b32 v19, 4, v1')
    k(f'v_xor_b32 v20, v18, v19')
    k(f'v_xor_b32 v21, 4, v20')
    k(f's_mov_b32 s38, {lda2}')
    k(f'v_mul_lo_u32 v22, s38, v17')
    k(f'v_lshl_add_u32 v{vXoffE}, v20, 4, v22')
    k(f'v_lshl_add_u32 v{vXoffO}, v21, 4, v22')
    k(f'v_and_b32 v20, 1, v19')
    k(f'v_lshlrev_b32 v20, 2, v20')
    k(f'v_xor_b32 v20, v18, v20')
    k(f's_mov_b32 s38, {ldb2}')
    k(f'v_mul_lo_u32 v22, s38, v17')
    k(f'v_lshl_add_u32 v{vWoff}, v20, 4, v22')
    k(f's_and_b32 s38, s37, {WM-1}')
    k(f's_lshr_b32 s39, s37, {WM.bit_length()-1}')
    assert WM & (WM - 1) == 0
    k('v_and_b32 v17, 31, v1')
    k('v_lshrrev_b32 v18, 5, v1')
    k('v_lshrrev_b32 v19, 1, v17')
    k('v_and_b32 v19, 7, v19')
    k(f's_mul_i32 s54, s38, {TM*32*128}')
    for t in range(4):
        k(f'v_add_u32 v20, {2*t}, v18')
        k('v_xor_b32 v20, v20, v19')
        k('v_lshlrev_b32 v20, 4, v20')
        k(f'v_lshl_add_u32 v20, v17, 7, v20')
        k(f'v_add_u32 v{vXr+t}, s54, v20')
    k('v_and_b32 v17, 15, v1')
    k('v_lshrrev_b32 v19, 2, v17')
    k('v_and_b32 v20, 3, v17')
    k('v_bfe_u32 v21, v1, 4, 1')
    k('v_lshlrev_b32 v22, 1, v21')
    k('v_lshrrev_b32 v23, 1, v20')
    k('v_add_u32 v22, v22, v23')
    k('v_bfe_u32 v23, v19, 1, 1')
    k('v_lshlrev_b32 v23, 2, v23')
    k('v_xor_b32 v22, v22, v23')
    k('v_lshlrev_b32 v22, 4, v22')
    k('v_and_b32 v23, 1, v20')
    k('v_lshl_add_u32 v22, v23, 3, v22')
    k('v_lshl_add_u32 v23, v18, 3, v19')
    k('v_lshl_add_u32 v22, v23, 7, v22')
    k(f'v_add_u32 v{vWr}, {XS}, v22')
    k(f'v_xor_b32 v{vWr+1}, 64, v{vWr}')
    k(f's_mul_i32 s55, s39, {TN}')
    for i in range(nacc):
        k(f'v_accvgpr_write_b32 a{i}, 0')
    k(f's_mul_i32 s67, s37, {nX}')
    k(f's_mul_i32 s68, s37, {nWi}')
    def issue():
        for i in range(nX):
            assert nX % 2 == 0
            k(f's_add_u32 s69, s67, {i}')
            k(f's_mul_i32 s70, s69, {8*lda2}')
            k('s_add_u32 s70, s70, s64')
            k('s_lshl_b32 s69, s69, 10')
            k('s_add_u32 m0, s69, s66')
            vo = vXoffE if i % 2 == 0 else vXoffO
            k(f'buffer_load_dwordx4 v{vo}, s[8:11], s70 offen lds')
        for i in range(nWi):
            k(f's_add_u32 s69, s68, {i}')
            k('s_and_b32 s71, s69, 7')
            k(f's_mul_i32 s70, s71, {8*ldb2}')
            k('s_add_u32 s70, s70, s65')
            k('s_lshl_b32 s72, s69, 10')
            k('s_add_u32 s72, s72, s66')
            k(f's_add_u32 m0, s72, {XS}')
            if NBLK == 1:
                k(f'buffer_load_dwordx4 v{vWoff}, s[12:15], s70 offen lds')
            else:
                k('s_lshr_b32 s69, s69, 3')
                end = k.label('we')
                for b in range(NBLK):
                    nxt = k.label('wb')
                    if b < NBLK - 1:
                        k(f's_cmp_lg_u32 s69, {b}')
                        k(f's_cbranch_scc1 {nxt}')
                    k(f'buffer_load_dwordx4 v{vWoff}, s[{12+4*b}:{15+4*b}], s70 offen lds')
                    if b < NBLK - 1:
                        k(f's_branch {end}')
                        k.put(nxt)
                k.put(end)
    per_stage = nX + nWi
    k('s_mov_b32 s64, 0')
    k('s_mov_b32 s65, 0')
    k('s_mov_b32 s66, 0')
    issue()
    k(f's_mov_b32 s64, {BK*2}')
    k(f's_mov_b32 s65, {BK*ldb2}')
    k(f's_mov_b32 s66, {STG}')
    issue()
    k('s_mov_b32 s73, 0')
    k('s_mov_b32 s74, 0')
    k(f's_mov_b32 s66, {2*STG if NBUF == 3 else 0}')
    loop = k.label('loop')
    k.put(loop)
    k(f's_waitcnt vmcnt({per_stage})')
    k('s_barrier')
    def issue_next():
        k(f's_add_u32 s64, s64, {BK*2}')
        k(f's_add_u32 s65, s65, {BK*ldb2}')
        issue()
        k(f's_add_u32 s66, s66, {STG}')
        k(f's_cmp_ge_u32 s66, {NBUF*STG}')
        k(f's_cselect_b32 s75, {NBUF*STG}, 0')
        k('s_sub_u32 s66, s66, s75')
    if NBUF == 3:
        issue_next()
    for t in range(4):
        k(f'v_add_u32 v{vXa+t}, s74, v{vXr+t}')
    for q in range(2):
        k(f'v_add_u32 v{vWa+q}, s74, v{vWr+q}')
    for i in range(TN):
        k(f's_add_u32 s76, s55, {i}')
        k('s_and_b32 s77, s76, 1')
        k('s_lshr_b32 s76, s76, 1')
        k(f's_mul_i32 s76, s76, {BK*128}')
        k('s_cmp_eq_u32 s77, 0')
        k(f's_cselect_b64 s[78:79], -1, 0')
        k(f'v_cndmask_b32 v{vt+i}, v{vWa+1}, v{vWa}, s[78:79]')
        k(f'v_add_u32 v{vt+i}, s76, v{vt+i}')
    def reads(t, st):
        for j in range(TM):
            r = fX + (st * TM + j) * 4
            k(f'ds_read_b128 v[{r}:{r+3}], v{vXa+t} offset:{j*32*128}')
        for i in range(TN):
            r = fW + (st * TN + i) * 4
            k(f'ds_read_b64_tr_b16 v[{r}:{r+1}], v{vt+i} offset:{t*2048}')
            k(f'ds_read_b64_tr_b16 v[{r+2}:{r+3}], v{vt+i} offset:{t*2048+512}')
    nrd = TM + 2 * TN
    reads(0, 0)
    for t in range(4):
        st = t & 1
        if t < 3:
            reads(t + 1, st ^ 1)
            k(f's_waitcnt lgkmcnt({nrd})')
        else:
            k('s_waitcnt lgkmcnt(0)')
        for j in range(TM):
            for i in range(TN):
                a = (j * TN + i) * 16
                rx = fX + (st * TM + j) * 4
                rw = fW + (st * TN + i) * 4
                k(f'v_mfma_f32_32x32x16_bf16 a[{a}:{a+15}], v[{rw}:{rw+3}], v[{rx}:{rx+3}], a[{a}:{a+15}]')
    if NBUF == 2:
        k('s_barrier')
        issue_next()
    k(f's_add_u32 s74, s74, {STG}')
    k(f's_cmp_ge_u32 s74, {NBUF*STG}')
    k(f's_cselect_b32 s75, {NBUF*STG}, 0')
    k('s_sub_u32 s74, s74, s75')
    k('s_add_u32 s73, s73, 1')
    k(f's_cmp_lt_u32 s73, {KT}')
    k(f's_cbranch_scc1 {loop}')
    k('s_nop 15')
    k('s_nop 3')
    k('v_and_b32 v17, 31, v1')
    k('v_lshrrev_b32 v18, 5, v1')
    k(f's_mul_i32 s64, s35, {BM}')
    k(f's_mul_i32 s65, s38, {TM*32}')
    k('s_add_u32 s64, s64, s65')
    k('v_add_u32 v17, s64, v17')
    k(f's_mov_b32 s65, {ldo2}')
    k('v_mul_lo_u32 v17, s65, v17')
    k(f's_mul_i32 s64, s34, {BN}')
    k(f's_lshl_b32 s65, s55, 5')
    k('s_add_u32 s64, s64, s65')
    k('v_lshlrev_b32 v18, 2, v18')
    k('v_add_u32 v18, s64, v18')
    k('v_lshlrev_b32 v18, 1, v18')
    k('v_add_u32 v17, v17, v18')
    GC = '0x3f4c422a'
    for j in range(TM):
        for i in range(TN):
            a = (j * TN + i) * 16
            for q in range(4):
                imm = (i * 32 + 8 * q) * 2
                rowoff = j * 32 * ldo2
                if 'res' in epi:
                    k(f's_mov_b32 s66, {rowoff}')
                    k(f'buffer_load_dwordx2 v[20:21], v17, s[56:59], s66 offen offset:{imm}')
                if 'bias' in epi:
                    k(f'buffer_load_dwordx2 v[22:23], v18, s[60:63], 0 offen offset:{imm}')
                for e in range(4):
                    k(f'v_accvgpr_read_b32 v{24+e}, a{a+4*q+e}')
                if 'res' in epi or 'bias' in epi:
                    k('s_waitcnt vmcnt(0)')
                if epi != 'plain':
                    k('v_cvt_pk_bf16_f32 v28, v24, v25')
                    k('v_cvt_pk_bf16_f32 v29, v26, v27')
                    k('v_lshlrev_b32 v24, 16, v28')
                    k('v_and_b32 v25, 0xffff0000, v28')
                    k('v_lshlrev_b32 v26, 16, v29')
                    k('v_and_b32 v27, 0xffff0000, v29')
                if 'bias' in epi:
                    k('v_lshlrev_b32 v28, 16, v22')
                    k('v_and_b32 v29, 0xffff0000, v22')
                    k('v_lshlrev_b32 v30, 16, v23')
                    k('v_and_b32 v31, 0xffff0000, v23')
                    for e in range(4):
                        k(f'v_add_f32 v{24+e}, v{24+e}, v{28+e}')
                    k('v_cvt_pk_bf16_f32 v28, v24, v25')
                    k('v_cvt_pk_bf16_f32 v29, v26, v27')
                    k('v_lshlrev_b32 v24, 16, v28')
                    k('v_and_b32 v25, 0xffff0000, v28')
                    k('v_lshlrev_b32 v26, 16, v29')
                    k('v_and_b32 v27, 0xffff0000, v29')
                if epi == 'bias_gelu':
                    k('s_mov_b32 s66, 0x3d372713')
                    k('s_mov_b32 s67, 0xc0135761')
                    for e in range(4):
                        x = 24 + e
                        k(f'v_mul_f32 v28, v{x}, v{x}')
                        k(f'v_mul_f32 v28, v28, v{x}')
                        k(f'v_fma_f32 v28, s66, v28, v{x}')
                        k(f'v_mul_f32 v28, s67, v28')
                        k(f'v_exp_f32 v28, v28')
                        k('s_nop 0')
                        k(f'v_add_f32 v28, 1.0, v28')
                        k(f'v_rcp_f32 v28, v28')
                        k('s_nop 0')
                        k(f'v_mul_f32 v{x}, v{x}, v28')
                if 'res' in epi:
                    k('v_lshlrev_b32 v28, 16, v20')
                    k('v_and_b32 v29, 0xffff0000, v20')
                    k('v_lshlrev_b32 v30, 16, v21')
                    k('v_and_b32 v31, 0xffff0000, v21')
                    for e in range(4):
                        k(f'v_add_f32 v{24+e}, v{24+e}, v{28+e}')
                k('v_cvt_pk_bf16_f32 v28, v24, v25')
                k('v_cvt_pk_bf16_f32 v29, v26, v27')
                k(f's_mov_b32 s66, {rowoff}')
                k(f'buffer_store_dwordx2 v[28:29], v17, s[28:31], s66 offen offset:{imm}')
                k('s_nop 1')
    k.put(done)
    return k
```

```python
import sys, os
sys.path.insert(0, os.path.dirname(__file__))
from asmlib import *
from k_ln import gen_ln
from k_gemm import gen_gemm

MB = 1 << 20
WS_XN, WS_QKV, WS_OX, WS_X1, WS_H, WS_X2, WS_MQKV, WS_ACC, WS_FLAG = 0, 4*MB, 52*MB, 68*MB, 72*MB, 88*MB, 92*MB, 108*MB, 116*MB

HEADER = open('interleave_layers__memory_aug_recurrent_mem_tr__mixer_channel_mlp__prompt.s.ref').read().split('; Override launch')[0]

def build(path, upto=None):
    kerns = {}
    launches = []
    def add(k, grid=None, block=None, lds=None):
        kerns[k.name] = k
        launches.append((k.name, grid or k.grid, block or k.block, lds if lds is not None else getattr(k, 'lds', 0)))
    def relaunch(k):
        launches.append((k.name, k.grid, k.block, getattr(k, 'lds', 0)))
    ln1a = gen_ln('ln1a_kernel', 'arg', ARG['x'], WS_XN, False); ln1a.grid, ln1a.block = 512, 256
    ln1b = gen_ln('ln1b_kernel', 'ws', WS_X2, WS_XN, False); ln1b.grid, ln1b.block = 512, 256
    ln2 = gen_ln('ln2_kernel', 'ws', WS_X1, WS_XN, True); ln2.grid, ln2.block = 512, 256
    gq = gen_gemm('gqkv_kernel', 2048, 12288, 1024, WS_XN, [ARG['Wq'], ARG['Wk'], ARG['Wv']], 4096, WS_QKV, 'plain', 4, 2, 2, 2)
    goa = gen_gemm('goa_kernel', 2048, 1024, 4096, WS_OX, [ARG['Wo']], 1024, WS_X1, 'res', 2, 2, 1, 1, res_kind='arg', res_off=ARG['x'])
    gob = gen_gemm('gob_kernel', 2048, 1024, 4096, WS_OX, [ARG['Wo']], 1024, WS_X1, 'res', 2, 2, 1, 1, res_kind='ws', res_off=WS_X2)
    g1 = gen_gemm('g1_kernel', 2048, 3584, 1024, WS_XN, [ARG['w1']], 3584, WS_H, 'bias_gelu', 4, 1, 2, 4*0+4, bias_slot=ARG['b1'])
    g2a = gen_gemm('g2a_kernel', 2048, 1024, 3584, WS_H, [ARG['w2']], 1024, WS_X2, 'bias_res', 2, 2, 1, 1, res_kind='ws', res_off=WS_X1, bias_slot=ARG['b2'])
    g2b = gen_gemm('g2b_kernel', 2048, 1024, 3584, WS_H, [ARG['w2']], 1024, ARG['out'], 'bias_res', 2, 2, 1, 1, res_kind='ws', res_off=WS_X1, bias_slot=ARG['b2'], out_kind='arg')
    try:
        from k_rec import gen_att, gen_zero
        from k_rec4 import gen_rec4 as gen_rec
        have_rec = True
    except ImportError:
        have_rec = False
    seq = []
    for layer in range(2):
        add(ln1a if layer == 0 else ln1b)
        if layer == 0: add(gq)
        else: relaunch(gq)
        if have_rec:
            if layer == 0:
                zk = gen_zero('zero_kernel', WS_ACC, WS_FLAG)
                rk = gen_rec('rec_kernel', WS_QKV, WS_MQKV, WS_ACC, WS_FLAG, prof=bool(os.environ.get('PROF')))
                ak = gen_att('att_kernel', WS_QKV, WS_MQKV, WS_OX)
            if layer == 0:
                add(zk); add(rk); add(ak)
            else:
                relaunch(zk); relaunch(rk); relaunch(ak)
        add(goa if layer == 0 else gob)
        if layer == 0:
            add(ln2); add(g1); add(g2a)
        else:
            relaunch(ln2); relaunch(g1); add(g2b)
    if upto is not None:
        launches = launches[:upto]
    used = []
    for l in launches:
        if l[0] not in used: used.append(l[0])
    out = [HEADER.rstrip('\n')]
    for nm, g, b, lds in launches:
        out.append(f'; @launch kernel={nm} grid=({g},1,1) block=({b},1,1) lds={lds}')
    out.append('.amdgcn_target "amdgcn-amd-amdhsa--gfx950"')
    out.append('.text')
    for nm in used:
        out.append(kerns[nm].text())
    out.append('.section .rodata,"a"')
    for nm in used:
        out.append('.p2align 6')
        out.append(kerns[nm].desc())
    open(path, 'w').write('\n'.join(out) + '\n')
    return launches

if __name__ == '__main__':
    upto = int(sys.argv[1]) if len(sys.argv) > 1 else None
    p = sys.argv[2] if len(sys.argv) > 2 else 'interleave_layers__memory_aug_recurrent_mem_tr__mixer_channel_mlp__prompt.s'
    l = build(p, upto)
    print(len(l), 'launches')
```
